```python
import torch

def _softmax(x, axis=-1):
    return torch.softmax(x, dim=axis)

def _gelu(x):
    return torch.nn.functional.gelu(x, approximate='tanh')

def _silu(x):
    return torch.nn.functional.silu(x)

def _sigmoid(x):
    return torch.sigmoid(x)

def _layernorm(x, axis=-1, eps=1e-05):
    m = x.mean(dim=axis, keepdim=True)
    v = x.var(dim=axis, keepdim=True, unbiased=False)
    return (x - m) / torch.sqrt(v + eps)

def _scatter_add(tgt, idx, src, axis=0):
    return tgt.clone().index_add_(axis, idx, src)

def _segment_sum(src, seg, n):
    out = torch.zeros((n,) + src.shape[1:], dtype=src.dtype)
    return out.index_add_(0, seg, src)

def _pad(x, pw):
    flat = tuple((v for pair in reversed(pw) for v in pair))
    return torch.nn.functional.pad(x, flat)
kernel_name = 'adaLN_cond__grouped_kv_mqa__dense_activation_silu__prompt'

def setup_inputs():

    _w = lambda a: (lambda t: t.to(torch.bfloat16) if t.is_floating_point() else t)(torch.as_tensor(a))

    def _A_setup():
        B, S, D, H = (1, 2048, 512, 32)
        Dh = D // H
        return {'x': _w((lambda *s: torch.randn(*s, dtype=torch.bfloat16) * 0.05)(B, S, D)), 'wq': _w((lambda *s: torch.randn(*s, dtype=torch.bfloat16) * 0.05)(D, H * Dh)), 'wk': _w((lambda *s: torch.randn(*s, dtype=torch.bfloat16) * 0.05)(D, Dh)), 'wv': _w((lambda *s: torch.randn(*s, dtype=torch.bfloat16) * 0.05)(D, Dh)), 'wo': _w((lambda *s: torch.randn(*s, dtype=torch.bfloat16) * 0.05)(H * Dh, D))}
    _A_in = _A_setup()

    def _B_setup():
        B, S, D, F = (1, 2048, 512, 1376)
        return {'x': _w((lambda *s: torch.randn(*s, dtype=torch.bfloat16) * 0.05)(B, S, D)), 'w1': _w((lambda *s: torch.randn(*s, dtype=torch.bfloat16) * 3.2)(D, F) * D ** (-0.5)), 'w2': _w((lambda *s: torch.randn(*s, dtype=torch.bfloat16) * 1.6)(F, D) * F ** (-0.5))}
    _B_in = _B_setup()
    return {'A_x': _A_in['x'], 'A_wq': _A_in['wq'], 'A_wk': _A_in['wk'], 'A_wv': _A_in['wv'], 'A_wo': _A_in['wo'], 'B_x': _B_in['x'], 'B_w1': _B_in['w1'], 'B_w2': _B_in['w2'], 'c': _w((lambda *s: torch.randn(*s, dtype=torch.bfloat16) * 0.1)(1, 512) * 8.0), 'w_mod': _w((lambda *s: torch.randn(*s, dtype=torch.bfloat16) * 0.1)(512, 6 * 512) * 512 ** (-0.5) * 8.0)}

def reference(A_x, A_wq, A_wk, A_wv, A_wo, B_x, B_w1, B_w2, c, w_mod):

    def _A_ref(x, wq, wk, wv, wo):
        B, S, D = x.shape
        H = 32
        Dh = D // H
        q = (lambda x, *d: x.permute(*d))((x @ wq).reshape(B, S, H, Dh), 0, 2, 1, 3)
        k = x @ wk
        v = x @ wv
        scores = torch.einsum('bhqd,bkd->bhqk', q, k) * Dh ** (-0.5)
        p = _softmax(scores, axis=-1)
        o = torch.einsum('bhqk,bkd->bhqd', p, v)
        return (lambda x, *d: x.permute(*d))(o, 0, 2, 1, 3).reshape(B, S, H * Dh) @ wo

    def _B_ref(x, w1, w2):
        h = torch.einsum('bsd,df->bsf', x, w1)
        h = _silu(h)
        out = torch.einsum('bsf,fd->bsd', h, w2)
        return out
    x = A_x
    mod = (_silu(c) @ w_mod).reshape(c.shape[0], 6, 1, -1)
    sa, ca, ga, sb, cb, gb = (mod[:, 0].clone(), mod[:, 1].clone(), mod[:, 2].clone(), mod[:, 3].clone(), mod[:, 4].clone(), mod[:, 5].clone())
    h = _layernorm(x, axis=-1) * (1 + ca) + sa
    x = x + ga * _A_ref(h, A_wq, A_wk, A_wv, A_wo)
    h = _layernorm(x, axis=-1) * (1 + cb) + sb
    x = x + gb * _B_ref(h, B_w1, B_w2)
    return x
```

```python
import re


class Asm:
    def __init__(self):
        self.lines = []
        self._uid = 0

    def __call__(self, text):
        for ln in text.split("\n"):
            ln = ln.strip()
            if ln:
                self.lines.append(ln)

    def label(self, name):
        self.lines.append(name + ":")

    def uid(self, p="L"):
        self._uid += 1
        return f"{p}_{self._uid}"


def v(a, n=1):
    return f"v{a}" if n == 1 else f"v[{a}:{a + n - 1}]"


def s(a, n=1):
    return f"s{a}" if n == 1 else f"s[{a}:{a + n - 1}]"


_REG = re.compile(r"^(-|abs\(|\|)?([vsa])(\d+|\[(\d+):(\d+)\])\)?\|?$")


def regs_of(tok):
    tok = tok.strip()
    if tok in ("vcc", "exec", "m0", "scc"):
        return {tok}
    if tok in ("vcc_lo", "vcc_hi"):
        return {"vcc"}
    if tok in ("exec_lo", "exec_hi"):
        return {"exec"}
    m = _REG.match(tok)
    if not m:
        return set()
    k = m.group(2)
    if m.group(4) is not None:
        return {f"{k}{i}" for i in range(int(m.group(4)), int(m.group(5)) + 1)}
    return {f"{k}{m.group(3)}"}


TRANS = ("v_exp_f32", "v_log_f32", "v_rcp_f32", "v_rsq_f32", "v_sqrt_f32", "v_sin_f32", "v_cos_f32")


class Ins:
    __slots__ = ("text", "op", "kind", "dst", "src", "A", "B", "C", "passes", "dpp", "trans", "perm", "rdlane",
                 "wide_store", "ldsdma", "states", "target", "uncond", "sdata", "dot")

    def __init__(self, text):
        self.text = text
        code = text.split(";")[0].strip()
        parts = code.split(None, 1)
        op = parts[0]
        self.op = op
        rest = parts[1] if len(parts) > 1 else ""
        ops, depth, cur = [], 0, ""
        for ch in rest:
            if ch in "[(":
                depth += 1
            if ch in "])":
                depth -= 1
            if ch == "," and depth == 0:
                ops.append(cur.strip())
                cur = ""
            else:
                cur += ch
        if cur.strip():
            ops.append(cur.strip())
        mods = ""
        if ops:
            last = ops[-1].split(None, 1)
            ops[-1] = last[0]
            mods = last[1] if len(last) > 1 else ""
        R = [regs_of(o) for o in ops]
        U = lambda L: set().union(*L) if L else set()
        self.dst, self.src = set(), set()
        self.A = self.B = self.C = set()
        self.passes = 0
        self.dpp = "_dpp" in op or "row_" in mods or "quad_perm" in mods
        self.trans = op.replace("_e32", "").replace("_e64", "") in TRANS
        self.perm = op.startswith("v_permlane")
        self.rdlane = op.startswith("v_readlane") or op.startswith("v_readfirstlane")
        self.wide_store = False
        self.ldsdma = False
        self.states = 1
        self.target = None
        self.uncond = False
        self.sdata = set()
        self.dot = op.startswith("v_dot")
        if op.startswith("v_mfma"):
            self.kind = "mfma"
            self.dst, self.A, self.B, self.C = R[0], R[1], R[2], R[3]
            self.src = R[1] | R[2] | R[3]
            self.passes = 8 if "32x32x16" in op else 4 if "16x16x32" in op else None
            assert self.passes, op
        elif op.startswith("v_"):
            self.kind = "valu"
            if op.startswith("v_cmp"):
                self.dst, self.src = R[0], U(R[1:])
            elif self.perm:
                self.dst = self.src = R[0] | R[1]
            elif "_co_" in op:
                self.dst, self.src = R[0] | R[1], U(R[2:])
            elif op == "v_nop":
                pass
            else:
                self.dst, self.src = R[0], U(R[1:])
                if op.startswith(("v_fmac", "v_dot2c", "v_pk_fmac", "v_writelane")) or self.dpp or "UNUSED_PRESERVE" in mods:
                    self.src = self.src | R[0]
        elif op.startswith(("buffer_load", "global_load")):
            self.kind = "vmem"
            if " lds" in (" " + mods):
                self.ldsdma = True
                self.src = U(R)
            else:
                self.dst, self.src = R[0], U(R[1:])
        elif op.startswith(("buffer_store", "global_store", "buffer_atomic", "global_atomic")):
            self.kind = "vmem"
            self.src = U(R)
            if op.endswith(("x3", "x4")):
                self.wide_store = True
                self.sdata = R[0] if op.startswith("buffer") else R[1]
        elif op.startswith("ds_"):
            self.kind = "ds"
            if op.startswith(("ds_read", "ds_bpermute", "ds_permute", "ds_swizzle")) or "_rtn" in op:
                self.dst, self.src = R[0], U(R[1:])
            else:
                self.src = U(R)
        elif op.startswith("s_"):
            self.kind = "salu"
            if op == "s_nop":
                self.states = int(ops[0], 0) + 1
            elif op.startswith(("s_branch", "s_cbranch")):
                self.target = ops[0]
                self.uncond = op == "s_branch"
            elif op in ("s_endpgm", "s_setpc_b64"):
                self.uncond = True
            elif op.startswith(("s_cmp", "s_waitcnt", "s_barrier", "s_sleep", "s_setprio", "s_bitcmp")):
                self.src = U(R)
            else:
                self.dst, self.src = R[0], U(R[1:])
                if "saveexec" in op:
                    self.dst = self.dst | {"exec"}
        else:
            raise ValueError("unknown instruction: " + text)


def _isv(r):
    return r[0] == "v" and r != "vcc"


def _iss(r):
    return (r[0] == "s" and r != "scc") or r == "vcc"


def need(p, c):
    n = 0
    if p.kind == "valu":
        vd = {r for r in p.dst if _isv(r)}
        sd = {r for r in p.dst if _iss(r)}
        if c.kind == "mfma" and vd & c.src:
            n = max(n, 2)
        if c.kind == "valu":
            if vd & c.src:
                if c.dpp or c.perm:
                    n = max(n, 2)
                if c.rdlane:
                    n = max(n, 1)
                if p.trans and not c.trans:
                    n = max(n, 1)
                if "sdwa" in p.op:
                    n = max(n, 1)
            if p.dot and vd & (c.src | c.dst) and not (c.op == p.op):
                n = max(n, 3)
            if sd & c.src:
                n = max(n, 4 if c.op.startswith(("v_readlane", "v_writelane")) else 2)
        if p.dot and c.kind in ("vmem", "ds", "mfma") and vd & c.src:
            n = max(n, 3)
        if p.trans and c.kind in ("vmem", "ds") and vd & c.src:
            n = max(n, 1)
        if c.kind == "vmem" and sd & c.src:
            n = max(n, 5)
        if c.kind == "salu" and sd & c.src:
            n = max(n, 1)
    if p.kind == "mfma":
        big = {4: 8, 8: 12}[p.passes]
        if c.kind in ("valu", "vmem", "ds") and p.dst & (c.src | c.dst):
            n = max(n, big)
        if c.kind == "mfma":
            if p.dst & (c.A | c.B):
                n = max(n, big)
            if p.dst & c.C and not (p.dst == c.C and p.passes == c.passes):
                n = max(n, big - 2)
            if p.dst & c.dst and not (p.dst == c.dst and p.passes == c.passes):
                n = max(n, big - 2)
        if c.kind == "valu" and p.C & c.dst:
            n = max(n, {4: 3, 8: 7}[p.passes])
    if p.kind == "salu" and "m0" in p.dst and c.ldsdma:
        n = max(n, 1)
    if p.wide_store and p.sdata & c.dst:
        n = max(n, 2 if c.kind in ("valu", "mfma") else 1)
    return n


def resolve(lines, verbose=False):
    items = []
    for ln in lines:
        if ln.endswith(":") or ln.startswith(".") or ln.startswith(";"):
            items.append(ln)
        else:
            items.append(Ins(ln))
    W = 13
    total = 0
    changed = True
    start = 0
    while changed:
        changed = False
        labelpos = {it[:-1]: i for i, it in enumerate(items) if isinstance(it, str) and it.endswith(":")}
        jumps = {}
        for i, it in enumerate(items):
            if isinstance(it, Ins) and it.target:
                jumps.setdefault(labelpos[it.target], []).append(i)
        out = items[:start]
        for i in range(start, len(items)):
            c = items[i]
            if isinstance(c, Ins):
                worst = 0
                stack = [(i - 1, 0, True)]
                seen = set()
                while stack:
                    j, dist, fall = stack.pop()
                    while j >= 0 and dist < W:
                        it = items[j]
                        if isinstance(it, str):
                            if it.endswith(":"):
                                for b in jumps.get(j, []):
                                    if (b, dist) not in seen:
                                        seen.add((b, dist))
                                        stack.append((b, dist, False))
                            j -= 1
                            fall = True
                            continue
                        if fall and it.uncond:
                            break
                        fall = True
                        k = need(it, c) - dist
                        if k > worst:
                            worst = k
                            why = it
                        dist += it.states
                        j -= 1
                if worst > 0:
                    if verbose:
                        print(f"; nop {worst}: {why.text}  ->  {c.text}")
                    out.append(Ins(f"s_nop {worst - 1}"))
                    total += 1
                    changed = True
                    out.append(c)
                    out.extend(items[i + 1:])
                    start = i + 2
                    break
            out.append(c)
        items = out
    res = []
    for it in items:
        if isinstance(it, str):
            res.append(it)
        else:
            res.append("    " + it.text)
    return res, total
```

```python
import sys, struct, math
from asmlib import Asm, v, s, resolve

NAME = "adaLN_cond__grouped_kv_mqa__dense_activation_silu__prompt"
OPT = dict(diag=False, stop=99)
for a in sys.argv[1:]:
    if "=" in a:
        k, x = a.split("=")
        OPT[k] = int(x) if x.lstrip("-").isdigit() else x
DIAG = bool(OPT["diag"])


def f32(x):
    return "0x%08x" % struct.unpack("<I", struct.pack("<f", x))[0]


LOG2E = math.log2(math.e)
EPOCH = 0x0
XID = 0x400
FQ = 0x1000
FH2 = 0x2000
FHID = 0x3000
MODG = 0x8000
KV = 0x10000
WOP = 0x80000
QB = 0x100000
H2 = 0x300000
X1 = 0x500000
HID = 0x900000
W1P = 0xF00000
W2P = 0x1080000
STAMP = 0x1200000
WS_SIZE = 0x1300000
L_WQ = 0
L_H = 0
HROW = 1040
L_WKV = 66560
L_PKS = 99328
L_MOD1 = 115712
L_MISC = 119808
L_ZERO = L_MISC
L_BAD = L_MISC + 32
L_STAT = L_MISC + 64
L_PART = 120832
L_M = 133120
L_Q = 145408
L_ON = 153600
L_MOD2 = 155648
L_W1 = 0
L_RED = 0
LDS_SIZE = 163840
R_X, R_WQ, R_WKV, R_PK, R_C, R_WM, R_OUT, R_WS = 32, 36, 40, 44, 48, 52, 56, 60
sW, sSlot, sJ8, sG8, sJ16, sTag, sEp, sSub = 64, 65, 66, 67, 68, 70, 71, 69
sT = 72
sLN = 80
sBad = 96
sCnt = 98
sI = 99
sPkD, sPkS = 30, 31
sPkK = 100
sSafe = 101
SPIN = 1 << 17

a = Asm()
nstamp = [0]
stamp_names = []


STAMPS = dict(start=0, ln1=1, t1=2, done=11, modpub=3, kvpub=3, probe=4, attn0=5, attn1=6, h2rdy=7, ffn1=8,
              qgemm=3, wo=6, h2pub=7, hid0=8, ffn2=9)


def stamp(name):
    if not DIAG:
        return
    k = STAMPS[name]
    a(f"s_memrealtime {s(4 + 2 * k, 2)}")


def srd(r, ptr, size):
    a(f"s_mov_b32 {s(r)}, {s(ptr)}\ns_mov_b32 {s(r+1)}, {s(ptr+1)}\ns_mov_b32 {s(r+2)}, {size}\ns_mov_b32 {s(r+3)}, 0x20000")


def spin_guard():
    a(f"s_add_u32 {s(sCnt)}, {s(sCnt)}, 1\ns_cmp_gt_u32 {s(sCnt)}, {SPIN}\ns_cbranch_scc1 L_end")


def unpack(dlo, dhi, src):
    a(f"v_lshlrev_b32 {v(dlo)}, 16, {v(src)}\nv_and_b32 {v(dhi)}, 0xffff0000, {v(src)}")


def round_bf16(r, n, tmp):
    for i in range(0, n, 2):
        a(f"v_cvt_pk_bf16_f32 {v(tmp + i // 2)}, {v(r+i)}, {v(r+i+1)}")
    for i in range(0, n, 2):
        unpack(r + i, r + i + 1, tmp + i // 2)


def mod_loads(task, W, C, vt):
    a(f"""s_and_b32 {s(sT)}, {s(sSlot)}, 1
    s_lshr_b32 {s(sT+1)}, {s(sSlot)}, 1
    s_lshl_b32 {s(sT+1)}, {s(sT+1)}, 4
    s_mul_i32 {s(sT+2)}, {s(sT)}, {256*6144}
    s_add_u32 {s(sT+1)}, {s(sT+1)}, {s(sT+2)}""")
    if task == "w":
        a(f"s_sub_u32 {s(sT+2)}, {s(sW)}, 3\ns_lshl_b32 {s(sT+2)}, {s(sT+2)}, 11\ns_add_u32 {s(sT+1)}, {s(sT+1)}, {s(sT+2)}")
    a(f"""s_lshl_b32 {s(sT)}, {s(sT)}, 9
    v_mul_u32_u24 {v(vt)}, {4*6144//16}, v0
    v_lshrrev_b32 {v(vt+1)}, 1, v0
    buffer_load_dwordx2 {v(C,2)}, {v(vt+1)}, {s(R_C,4)}, {s(sT)} offen""")
    for i in range(4):
        a(f"buffer_load_dwordx4 {v(W+4*i,4)}, {v(vt)}, {s(R_WM,4)}, {s(sT+1)} offen")
        if i < 3:
            a(f"s_add_u32 {s(sT+1)}, {s(sT+1)}, 6144")


def mod_silu(C, T):
    unpack(T, T + 1, C)
    unpack(T + 2, T + 3, C + 1)
    for i in range(4):
        a(f"v_mul_f32 {v(T+4+i)}, {f32(-LOG2E)}, {v(T+i)}")
    for i in range(4):
        a(f"v_exp_f32 {v(T+4+i)}, {v(T+4+i)}")
    for i in range(4):
        a(f"v_add_f32 {v(T+4+i)}, 1.0, {v(T+4+i)}")
    for i in range(4):
        a(f"v_rcp_f32 {v(T+4+i)}, {v(T+4+i)}")
    for i in range(4):
        a(f"v_mul_f32 {v(T+i)}, {v(T+i)}, {v(T+4+i)}")
    round_bf16(T, 4, T + 8)


def mod_compute(W, S, ACC, U):
    for i in range(4):
        for j in range(4):
            unpack(U + 2 * j, U + 2 * j + 1, W + 4 * i + j)
        sel = i & 1
        for j in range(4):
            if i == 0:
                a(f"v_pk_mul_f32 {v(ACC+2*j,2)}, {v(U+2*j,2)}, {v(S,2)} op_sel:[0,0] op_sel_hi:[1,0]")
            else:
                a(f"v_pk_fma_f32 {v(ACC+2*j,2)}, {v(U+2*j,2)}, {v(S+(i&2),2)}, {v(ACC+2*j,2)} op_sel:[0,{sel},0] op_sel_hi:[1,{sel},1]")
    for j in range(4):
        a(f"v_permlane32_swap_b32 {v(ACC+j)}, {v(ACC+4+j)}")
    a(f"v_pk_add_f32 {v(ACC,2)}, {v(ACC,2)}, {v(ACC+4,2)}\nv_pk_add_f32 {v(ACC+2,2)}, {v(ACC+2,2)}, {v(ACC+6,2)}")
    for sh in (1, 2, 4, 8):
        for j in range(4):
            a(f"v_add_f32_dpp {v(ACC+j)}, {v(ACC+j)}, {v(ACC+j)} row_shr:{sh} row_mask:0xf bank_mask:0xf bound_ctrl:0")
    for j in range(4):
        a(f"v_add_f32_dpp {v(ACC+j)}, {v(ACC+j)}, {v(ACC+j)} row_bcast:15 row_mask:0xa bank_mask:0xf")
    a(f"v_mov_b32 {v(U)}, 0xff")
    for j in range(4):
        a(f"s_lshr_b32 {s(sT)}, {s(sTag)}, {8*j}\nv_bfi_b32 {v(ACC+j)}, {v(U)}, {s(sT)}, {v(ACC+j)}")


def mod_publish(task, ACC, vt):
    a(f"""s_and_b32 {s(sT)}, {s(sSlot)}, 1
    s_mul_i32 {s(sT)}, {s(sT)}, 12288
    s_lshr_b32 {s(sT+1)}, {s(sSlot)}, 1
    s_lshl_b32 {s(sT+1)}, {s(sT+1)}, 5
    s_add_u32 {s(sT)}, {s(sT)}, {s(sT+1)}
    s_add_u32 {s(sT)}, {s(sT)}, {MODG}""")
    if task == "w":
        a(f"s_sub_u32 {s(sT+2)}, {s(sW)}, 3\ns_lshl_b32 {s(sT+2)}, {s(sT+2)}, 12\ns_add_u32 {s(sT)}, {s(sT)}, {s(sT+2)}")
    a(f"""v_lshrrev_b32 {v(vt)}, 9, v0
    v_lshlrev_b32 {v(vt)}, 4, {v(vt)}
    s_mov_b32 exec_lo, 0x80000000
    s_mov_b32 exec_hi, 0x80000000
    buffer_store_dwordx4 {v(ACC,4)}, {v(vt)}, {s(R_WS,4)}, {s(sT)} offen sc1
    s_mov_b64 exec, -1""")


def tag_check(D, T, first):
    a(f"v_perm_b32 {v(T+1)}, {v(D+1)}, {v(D)}, {s(sT+6)}\nv_perm_b32 {v(T+2)}, {v(D+3)}, {v(D+2)}, {s(sT+7)}")
    if first:
        a(f"v_or_b32 {v(T)}, {v(T+1)}, {v(T+2)}\nv_xor_b32 {v(T)}, {s(sTag)}, {v(T)}")
    else:
        a(f"v_or_b32 {v(T+1)}, {v(T+1)}, {v(T+2)}\nv_xor_b32 {v(T+1)}, {s(sTag)}, {v(T+1)}\nv_or_b32 {v(T)}, {v(T)}, {v(T+1)}")


def poll_flags(vaddr, vdata, soff, mask_lo, mask_hi=0):
    L = a.uid("L_pf")
    a(f"s_mov_b32 exec_lo, {mask_lo:#x}\ns_mov_b32 exec_hi, {mask_hi:#x}\ns_mov_b32 {s(sCnt)}, 0")
    a.label(L)
    a(f"buffer_load_dword {v(vdata)}, {v(vaddr)}, {s(R_WS,4)}, {soff} offen sc1")
    spin_guard()
    a(f"s_waitcnt vmcnt(0)\nv_cmp_ne_u32 vcc, {s(sTag)}, {v(vdata)}\ns_cbranch_vccnz {L}\ns_mov_b64 exec, -1")


def store_flag(vt, soff):
    a(f"""v_mov_b32 {v(vt)}, {s(sTag)}
    v_mov_b32 {v(vt+1)}, 0
    s_mov_b64 exec, 1
    buffer_store_dword {v(vt)}, {v(vt+1)}, {s(R_WS,4)}, {soff} offen sc1
    s_mov_b64 exec, -1""")


MF32 = "v_mfma_f32_32x32x16_bf16"
MF16 = "v_mfma_f32_16x16x32_bf16"

a(f"""s_cmp_ge_u32 s2, 256
s_cbranch_scc1 L_exit
s_load_dwordx16 s[4:19], s[0:1], 0
s_load_dwordx8 s[20:27], s[0:1], 64
s_load_dwordx2 s[28:29], s[0:1], 96
v_lshrrev_b32 v1, 6, v0
v_and_b32 v0, 63, v0
v_readfirstlane_b32 {s(sW)}, v1
v_lshlrev_b32 v0, 4, v0
s_and_b32 {s(sSlot)}, s2, 7
s_lshl_b32 {s(sSlot)}, {s(sSlot)}, 5
s_lshr_b32 {s(sT)}, s2, 3
s_add_u32 {s(sSlot)}, {s(sSlot)}, {s(sT)}
s_and_b32 {s(sJ8)}, {s(sSlot)}, 7
s_lshr_b32 {s(sG8)}, {s(sSlot)}, 3
s_and_b32 {s(sJ16)}, {s(sSlot)}, 15
s_and_b32 {s(sSub)}, {s(sW)}, 3
s_mov_b32 {s(sSafe)}, 0
s_waitcnt lgkmcnt(0)
s_load_dword {s(sEp)}, s[28:29], {EPOCH}""")
srd(R_WM, 22, 512 * 6144)
srd(R_C, 20, 1024)
srd(R_WS, 28, WS_SIZE)
a(f"s_cmp_eq_u32 {s(sW)}, 0\ns_cbranch_scc0 L_nomod0")
a(f"""v_mov_b32 v4, -1
v_mov_b32 v5, -1
v_lshrrev_b32 v6, 1, v0
s_lshl_b32 {s(sT)}, {s(sSlot)}, 9
s_add_u32 {s(sT)}, {s(sT)}, {KV}
buffer_store_dwordx2 v[4:5], v6, {s(R_WS,4)}, {s(sT)} offen sc1""")
mod_loads(0, 128, 144, 146)
a.label("L_nomod0")
srd(R_X, 4, 2048 * 1024)
srd(R_WQ, 6, 512 * 1024)
a(f"s_lshl_b32 {s(sT)}, {s(sG8)}, 6\ns_add_u32 {s(sT)}, {s(sT)}, {s(sW)}")
for u in range(8):
    a(f"""s_add_u32 {s(sT+1)}, {s(sJ8)}, {u}
    s_and_b32 {s(sT+1)}, {s(sT+1)}, 7
    s_lshl_b32 {s(sT+1)}, {s(sT+1)}, 3
    s_add_u32 {s(sT+1)}, {s(sT+1)}, {s(sT)}
    s_lshl_b32 {s(sT+1)}, {s(sT+1)}, 10
    buffer_load_dwordx4 {v(32+4*u,4)}, v0, {s(R_X,4)}, {s(sT+1)} offen""")
a(f"""s_getpc_b64 {s(sT+2,2)}
L_pc0:
s_lshr_b32 {s(sT)}, s2, 3
s_lshl_b32 {s(sT)}, {s(sT)}, 3
s_add_u32 {s(sT)}, {s(sT)}, {s(sW)}
s_lshl_b32 {s(sT)}, {s(sT)}, 7
s_min_u32 {s(sT)}, {s(sT)}, L_codeend-L_pc0
v_mov_b32 v4, {s(sT)}
global_load_dword v31, v4, {s(sT+2,2)}""")
a(f"""v_lshrrev_b32 v4, 7, v0
v_lshlrev_b32 v4, 10, v4
v_and_b32 v5, 0x70, v0
v_add_u32 v4, v4, v5
s_lshl_b32 {s(sT)}, {s(sW)}, 16
s_lshl_b32 {s(sT+1)}, {s(sJ8)}, 7
s_add_u32 {s(sT)}, {s(sT)}, {s(sT+1)}
s_lshl_b32 {s(sT+1)}, {s(sW)}, 13""")
for n in range(8):
    a(f"s_add_u32 m0, {s(sT+1)}, {L_WQ + 1024*n}\nbuffer_load_dwordx4 v4, {s(R_WQ,4)}, {s(sT)} offen lds")
    if n < 7:
        a(f"s_add_u32 {s(sT)}, {s(sT)}, 8192")
a(f"s_cmp_eq_u32 {s(sW)}, 1\ns_cselect_b32 {s(R_WKV)}, s8, s10\ns_cselect_b32 {s(R_WKV+1)}, s9, s11\ns_mov_b32 {s(R_WKV+2)}, 16384\ns_mov_b32 {s(R_WKV+3)}, 0x20000")
srd(R_OUT, 24, 2048 * 1024)
a(f"""s_lshl_b32 {s(sT)}, {s(sSlot)}, 2
s_add_u32 {s(sT)}, {s(sT)}, {s(sSub)}
s_mov_b32 {s(R_PK+3)}, 0x20000
s_cmp_lt_u32 {s(sT)}, 344
s_cbranch_scc1 L_pk_w2
s_cmp_lt_u32 {s(sT)}, 696
s_cbranch_scc1 L_pk_w1
s_mov_b32 {s(R_PK)}, s12
s_mov_b32 {s(R_PK+1)}, s13
s_mov_b32 {s(R_PK+2)}, {512*1024}
s_cmp_lt_u32 {s(sT)}, 824
s_cselect_b32 {s(sPkK)}, 2, 3
s_sub_u32 {s(sT)}, {s(sT)}, 696
s_lshr_b32 {s(sT+1)}, {s(sT)}, 3
s_and_b32 {s(sT+2)}, {s(sT)}, 7
s_lshl_b32 s0, {s(sT+1)}, 15
s_lshl_b32 {s(sT+3)}, {s(sT+2)}, 7
s_add_u32 s0, s0, {s(sT+3)}
s_mov_b32 s1, 8192
s_mov_b32 s3, 8192
s_lshr_b32 {s(sT+3)}, {s(sT+1)}, 1
s_lshl_b32 {s(sPkD)}, {s(sT+3)}, 16
s_and_b32 {s(sT+3)}, {s(sT+1)}, 1
s_lshl_b32 {s(sT+3)}, {s(sT+3)}, 13
s_add_u32 {s(sPkD)}, {s(sPkD)}, {s(sT+3)}
s_lshr_b32 {s(sT+3)}, {s(sT+2)}, 1
s_lshl_b32 {s(sT+3)}, {s(sT+3)}, 14
s_add_u32 {s(sPkD)}, {s(sPkD)}, {s(sT+3)}
s_and_b32 {s(sT+3)}, {s(sT+2)}, 1
s_lshl_b32 {s(sT+3)}, {s(sT+3)}, 12
s_add_u32 {s(sPkD)}, {s(sPkD)}, {s(sT+3)}
s_add_u32 {s(sPkD)}, {s(sPkD)}, {WOP}
s_mov_b32 {s(sPkS)}, 1024
v_mov_b32 v2, v4
s_branch L_pk_done
L_pk_w2:
s_mov_b32 {s(R_PK)}, s18
s_mov_b32 {s(R_PK+1)}, s19
s_mov_b32 {s(R_PK+2)}, {1376*1024}
s_mov_b32 {s(sPkK)}, 0
s_lshr_b32 {s(sT+1)}, {s(sT)}, 2
s_and_b32 {s(sT+2)}, {s(sT)}, 3
s_lshl_b32 s0, {s(sT+1)}, 14
s_lshl_b32 {s(sT+3)}, {s(sT+2)}, 8
s_add_u32 s0, s0, {s(sT+3)}
s_mov_b32 s1, 4096
s_mov_b32 s3, 4096
s_mul_i32 {s(sPkD)}, {s(sT+2)}, {4*86}
s_add_u32 {s(sPkD)}, {s(sPkD)}, {s(sT+1)}
s_lshl_b32 {s(sPkD)}, {s(sPkD)}, 10
s_add_u32 {s(sPkD)}, {s(sPkD)}, {W2P}
s_mov_b32 {s(sPkS)}, {86*1024}
v_lshrrev_b32 v2, 8, v0
v_lshlrev_b32 v2, 10, v2
v_and_b32 v5, 0xf0, v0
v_add_u32 v2, v2, v5
s_branch L_pk_done
L_pk_w1:
s_mov_b32 {s(R_PK)}, s16
s_mov_b32 {s(R_PK+1)}, s17
s_mov_b32 {s(R_PK+2)}, {512*2752}
s_mov_b32 {s(sPkK)}, 1
s_sub_u32 {s(sT)}, {s(sT)}, 344
s_mul_i32 {s(sT+1)}, {s(sT)}, 5958
s_lshr_b32 {s(sT+1)}, {s(sT+1)}, 16
s_mul_i32 {s(sT+2)}, {s(sT+1)}, 11
s_sub_u32 {s(sT+2)}, {s(sT)}, {s(sT+2)}
s_lshr_b32 {s(sT+3)}, {s(sT+1)}, 1
s_lshl_b32 {s(sT+3)}, {s(sT+3)}, 5
s_and_b32 {s(sT+4)}, {s(sT+1)}, 1
s_lshl_b32 {s(sT+4)}, {s(sT+4)}, 3
s_add_u32 {s(sT+3)}, {s(sT+3)}, {s(sT+4)}
s_mul_i32 s0, {s(sT+3)}, 2752
s_lshl_b32 {s(sT+3)}, {s(sT+2)}, 8
s_add_u32 s0, s0, {s(sT+3)}
s_mov_b32 s1, {4*2752}
s_mov_b32 s3, {12*2752}
s_lshl_b32 {s(sPkD)}, {s(sT+2)}, 7
s_add_u32 {s(sPkD)}, {s(sPkD)}, {s(sT+1)}
s_lshl_b32 {s(sPkD)}, {s(sPkD)}, 10
s_add_u32 {s(sPkD)}, {s(sPkD)}, {W1P}
s_mov_b32 {s(sPkS)}, {32*1024}
v_lshrrev_b32 v2, 8, v0
v_mul_u32_u24 v2, 2752, v2
v_and_b32 v5, 0xf0, v0
v_add_u32 v2, v2, v5
L_pk_done:""")
assert all((p * 5958) >> 16 == p // 11 for p in range(352))
stamp("start")
a(f"""s_sub_u32 {s(sT)}, {s(sW)}, 1
s_cmp_lt_u32 {s(sT)}, 2
s_cbranch_scc0 L_nowkv
s_lshl_b32 {s(sT)}, {s(sT)}, 14
s_add_u32 {s(sT)}, {s(sT)}, {L_WKV}
s_mov_b32 {s(sT+1)}, 0""")
for n in range(4):
    a(f"s_add_u32 m0, {s(sT)}, {4096*n}")
    for q in range(4):
        a(f"buffer_load_dwordx4 v0, {s(R_WKV,4)}, {s(sT+1)} offen offset:{1024*q} lds")
    if n < 3:
        a(f"s_add_u32 {s(sT+1)}, {s(sT+1)}, 4096")
a(f"s_waitcnt vmcnt(25)\ns_branch L_xwait")
a.label("L_nowkv")
a(f"""s_waitcnt lgkmcnt(0)
s_mul_i32 {s(sTag)}, {s(sEp)}, 0x9e3779b1
s_add_u32 {s(sTag)}, {s(sTag)}, 0x7f4a7c15
s_cmp_eq_u32 {s(sW)}, 0
s_cbranch_scc0 L_nomod1
s_setprio 3
s_waitcnt vmcnt(21)""")
mod_silu(144, 148)
a("s_waitcnt vmcnt(17)")
mod_compute(128, 148, 160, 168)
mod_publish(0, 160, 168)
stamp("modpub")
a("s_setprio 0\ns_waitcnt vmcnt(10)\ns_branch L_xwait")
a.label("L_nomod1")
a("s_waitcnt vmcnt(9)")
a.label("L_xwait")
a(f"""s_waitcnt lgkmcnt(0)
s_mul_i32 {s(sTag)}, {s(sEp)}, 0x9e3779b1
s_add_u32 {s(sTag)}, {s(sTag)}, 0x7f4a7c15""")
for u in range(8):
    for j in range(4):
        unpack(64 + 8 * u + 2 * j, 64 + 8 * u + 2 * j + 1, 32 + 4 * u + j)
a(f"""s_cmp_lt_u32 {s(sW)}, 4
s_cbranch_scc0 L_b2s
s_cmp_eq_u32 {s(sPkK)}, 3
s_cbranch_scc1 L_b2done
s_lshl_b32 {s(sT)}, {s(sSub)}, 12
s_add_u32 m0, {s(sT)}, {L_PKS}
buffer_load_dwordx4 v2, {s(R_PK,4)}, s0 offen lds
s_add_u32 s0, s0, s1
s_add_u32 m0, {s(sT)}, {L_PKS+1024}
buffer_load_dwordx4 v2, {s(R_PK,4)}, s0 offen lds
s_add_u32 s0, s0, s3
s_add_u32 m0, {s(sT)}, {L_PKS+2048}
buffer_load_dwordx4 v2, {s(R_PK,4)}, s0 offen lds
s_add_u32 s0, s0, s1
s_add_u32 m0, {s(sT)}, {L_PKS+3072}
buffer_load_dwordx4 v2, {s(R_PK,4)}, s0 offen lds
s_branch L_b2done
L_b2s:
s_cmp_lt_u32 {s(sW)}, 6
s_cbranch_scc0 L_b2done""")
mod_loads("w", 32, 48, 50)
a.label("L_b2done")
for u in range(8):
    X = 64 + 8 * u
    t0 = 20 + 4 * (u & 1)
    a(f"""v_pk_add_f32 {v(t0,2)}, {v(X,2)}, {v(X+2,2)}
    v_pk_mul_f32 {v(t0+2,2)}, {v(X,2)}, {v(X,2)}
    v_pk_add_f32 {v(t0,2)}, {v(t0,2)}, {v(X+4,2)}
    v_pk_fma_f32 {v(t0+2,2)}, {v(X+2,2)}, {v(X+2,2)}, {v(t0+2,2)}
    v_pk_add_f32 {v(t0,2)}, {v(t0,2)}, {v(X+6,2)}
    v_pk_fma_f32 {v(t0+2,2)}, {v(X+4,2)}, {v(X+4,2)}, {v(t0+2,2)}
    v_add_f32 {v(4+u)}, {v(t0)}, {v(t0+1)}
    v_pk_fma_f32 {v(t0+2,2)}, {v(X+6,2)}, {v(X+6,2)}, {v(t0+2,2)}
    v_add_f32 {v(12+u)}, {v(t0+2)}, {v(t0+3)}""")
for b in (4, 12):
    for u in range(4):
        a(f"v_permlane32_swap_b32 {v(b+u)}, {v(b+4+u)}")
for b in (4, 12):
    a(f"v_pk_add_f32 {v(b,2)}, {v(b,2)}, {v(b+4,2)}\nv_pk_add_f32 {v(b+2,2)}, {v(b+2,2)}, {v(b+6,2)}")
for b in (4, 12):
    for u in range(2):
        a(f"v_permlane16_swap_b32 {v(b+u)}, {v(b+2+u)}")
for b in (4, 12):
    a(f"v_pk_add_f32 {v(b,2)}, {v(b,2)}, {v(b+2,2)}")
for sh in (8, 4, 2, 1):
    for r in (4, 5, 12, 13):
        a(f"v_add_f32_dpp {v(r)}, {v(r)}, {v(r)} row_ror:{sh} row_mask:0xf bank_mask:0xf")
a(f"""v_mov_b32 v20, {f32(1.0/512)}
v_mov_b32 v21, {f32(1e-5)}
v_mul_f32 v4, v20, v4
v_mul_f32 v5, v20, v5
v_fma_f32 v12, v12, v20, v21
v_fma_f32 v13, v13, v20, v21
v_fma_f32 v12, -v4, v4, v12
v_fma_f32 v13, -v5, v5, v13
v_max_f32 v12, v21, v12
v_max_f32 v13, v21, v13
v_rsq_f32 v12, v12
v_rsq_f32 v13, v13
v_mul_f32 v4, v4, -v12
v_mul_f32 v5, v5, -v13""".replace("v_mul_f32 v4, v4, -v12", "v_mul_f32_e64 v4, v4, -v12").replace("v_mul_f32 v5, v5, -v13", "v_mul_f32_e64 v5, v5, -v13"))
for u in range(8):
    e, rho = u & 1, ((u >> 1) & 1) + 2 * (u >> 2)
    a(f"v_readlane_b32 {s(sLN+2*u)}, {v(12+e)}, {16*rho}\nv_readlane_b32 {s(sLN+2*u+1)}, {v(4+e)}, {16*rho}")
for u in range(8):
    for j in range(4):
        X = 64 + 8 * u + 2 * j
        a(f"v_pk_fma_f32 {v(X,2)}, {v(X,2)}, {s(sLN+2*u,2)}, {s(sLN+2*u,2)} op_sel:[0,0,1] op_sel_hi:[1,0,1]")
stamp("ln1")
a(f"s_waitcnt vmcnt(0)\ns_barrier")
a(f"s_cmp_lt_u32 {s(sW)}, 4\ns_cbranch_scc0 L_s_pre")
a(f"""s_sub_u32 {s(sT)}, {s(sW)}, 1
s_cmp_lt_u32 {s(sT)}, 2
s_cbranch_scc0 L_a_poll
s_lshl_b32 {s(sT)}, {s(sT)}, 14
s_add_u32 {s(sT)}, {s(sT)}, {L_WKV}
v_lshrrev_b32 v4, 8, v0
v_lshlrev_b32 v4, 8, v4
v_and_b32 v5, 0xf0, v0
v_lshrrev_b32 v5, 1, v5
v_add3_u32 v4, v4, v5, {s(sT)}""")
for ks in range(16):
    for j in range(2):
        a(f"ds_read_b64_tr_b16 {v(128+4*ks+2*j,2)}, v4 offset:{ks*1024+j*128}")
a.label("L_a_poll")
a(f"""s_mov_b32 {s(sT+6)}, 0x0c0c0400
s_mov_b32 {s(sT+7)}, 0x04000c0c
s_lshl_b32 {s(sT)}, {s(sW)}, 10
s_add_u32 {s(sT)}, {s(sT)}, {MODG}
s_add_u32 {s(sT+1)}, {s(sT)}, 12288
s_mov_b32 {s(sCnt)}, 0
L_poll1:
buffer_load_dwordx4 v[4:7], v0, {s(R_WS,4)}, {s(sT)} offen sc1
buffer_load_dwordx4 v[8:11], v0, {s(R_WS,4)}, {s(sT+1)} offen sc1""")
spin_guard()
a("s_waitcnt vmcnt(1)")
tag_check(4, 12, True)
a("s_waitcnt vmcnt(0)")
tag_check(8, 12, False)
a(f"""v_cmp_ne_u32 vcc, 0, v12
s_cbranch_vccnz L_poll1
v_pk_add_f32 v[4:5], v[4:5], v[8:9]
v_pk_add_f32 v[6:7], v[6:7], v[10:11]""")
round_bf16(4, 4, 8)
a(f"s_cmp_lt_u32 {s(sW)}, 2\ns_cbranch_scc1 L_noadd1\nv_pk_add_f32 v[4:5], v[4:5], 1.0 op_sel_hi:[1,0]\nv_pk_add_f32 v[6:7], v[6:7], 1.0 op_sel_hi:[1,0]")
round_bf16(4, 4, 8)
a.label("L_noadd1")
a(f"""s_lshl_b32 {s(sT)}, {s(sW)}, 10
s_add_u32 {s(sT)}, {s(sT)}, {L_MOD1}
v_add_u32 v8, {s(sT)}, v0
ds_write_b128 v8, v[4:7]
s_branch L_t1""")
a.label("L_s_pre")
a(f"""v_lshrrev_b32 v4, 9, v0
v_lshlrev_b32 v4, 10, v4
v_bfe_u32 v5, v0, 6, 2
v_lshlrev_b32 v5, 7, v5
v_add_u32 v4, v4, v5
v_bfe_u32 v5, v0, 8, 1
v_lshlrev_b32 v5, 5, v5
v_add_u32 v4, v4, v5
v_bfe_u32 v5, v0, 4, 2
v_lshlrev_b32 v5, 3, v5
s_lshr_b32 {s(sT)}, {s(sSub)}, 1
s_lshl_b32 {s(sT)}, {s(sT)}, 6
v_add3_u32 v4, v4, v5, {s(sT)}""")
for ks in range(32):
    for j in range(2):
        a(f"ds_read_b64_tr_b16 {v(128+4*ks+2*j,2)}, v4 offset:{L_WQ+ks*2048+j*512}")
a(f"s_cmp_lt_u32 {s(sW)}, 6\ns_cbranch_scc0 L_s_nomod")
mod_silu(48, 4)
mod_compute(32, 4, 52, 8)
a("v_mov_b32 v28, v52\nv_mov_b32 v29, v53\nv_mov_b32 v30, v54\nv_mov_b32 v31, v55")
a.label("L_s_nomod")
a(f"""v_mov_b32 v4, 0
v_mov_b32 v5, 0
v_mov_b32 v6, 0
v_mov_b32 v7, 0
v_add_u32 v8, {L_MISC}, v0
ds_write_b128 v8, v[4:7]""")
a.label("L_t1")
a(f"""v_lshlrev_b32 v1, 1, v0
s_mul_i32 {s(sT)}, {s(sW)}, {HROW}
v_add_u32 v3, {s(sT)}, v0
v_add_u32 v1, {L_MOD1}, v1
s_waitcnt lgkmcnt(0)
s_barrier""")
stamp("t1")
a(f"""ds_read_b128 v[12:15], v1 offset:2048
ds_read_b128 v[4:7], v1
ds_read_b128 v[16:19], v1 offset:2064
ds_read_b128 v[8:11], v1 offset:16""")


def h_row(u, first=False):
    X = 64 + 8 * u
    T = 20 + 4 * (u & 1)
    for j in range(4):
        if first and j == 0:
            a("s_waitcnt lgkmcnt(2)")
        if first and j == 2:
            a("s_waitcnt lgkmcnt(0)")
        a(f"v_pk_fma_f32 {v(X+2*j,2)}, {v(X+2*j,2)}, {v(12+2*j,2)}, {v(4+2*j,2)}")
    for j in range(4):
        a(f"v_cvt_pk_bf16_f32 {v(T+j)}, {v(X+2*j)}, {v(X+2*j+1)}")
    a(f"ds_write_b128 v3, {v(T,4)} offset:{L_H + u*8*HROW}")


h_row(0, True)
a(f"s_waitcnt lgkmcnt(0)\ns_barrier")
a(f"""s_sub_u32 {s(sT)}, {s(sW)}, 1
s_cmp_lt_u32 {s(sT)}, 2
s_cbranch_scc0 L_nokv
s_setprio 3
v_lshrrev_b32 v25, 8, v0
v_lshlrev_b32 v25, 4, v25
s_cmp_eq_u32 {s(sW)}, 1
s_cbranch_scc0 L_vproj
v_bfe_u32 v24, v0, 4, 3
v_mad_u32_u24 v24, v24, {s(sT+6)}, v25""".replace(f"v_mad_u32_u24 v24, v24, {s(sT+6)}, v25", f"v_mul_u32_u24 v24, {HROW}, v24\nv_add_u32 v24, v24, v25"))
for ks in range(16):
    a(f"ds_read_b128 {v(192+4*ks,4)}, v24 offset:{L_H + ks*64}")
a(f"v_bfe_u32 v24, v0, 4, 3\nv_lshlrev_b32 v24, 5, v24\nv_add_u32 v24, v24, v25\ns_mov_b32 {s(sT+1)}, 0x00ff00ff")
for ks in range(16):
    a(f"s_waitcnt lgkmcnt({15-ks})\n{MF16} v[32:35], {v(128+4*ks,4)}, {v(192+4*ks,4)}, {'0' if ks == 0 else 'v[32:35]'}")
a(f"""s_branch L_kvout
L_vproj:
v_bfe_u32 v24, v0, 4, 2
v_bfe_u32 v26, v0, 7, 1
v_lshl_add_u32 v24, v26, 2, v24
v_mul_u32_u24 v24, {HROW}, v24
v_add_u32 v24, v24, v25""")
for ks in range(16):
    a(f"ds_read_b128 {v(192+4*ks,4)}, v24 offset:{L_H + ks*64}")
a(f"v_add_u32 v24, 256, v0\ns_mov_b32 {s(sT+1)}, 0x0000ffff")
for ks in range(16):
    a(f"s_waitcnt lgkmcnt({15-ks})\n{MF16} v[32:35], {v(192+4*ks,4)}, {v(128+4*ks,4)}, {'0' if ks == 0 else 'v[32:35]'}")
a.label("L_kvout")
a(f"""s_lshl_b32 {s(sT)}, {s(sSlot)}, 9
s_add_u32 {s(sT)}, {s(sT)}, {KV}
v_cvt_pk_bf16_f32 v36, v32, v33
v_cvt_pk_bf16_f32 v37, v34, v35
v_cvt_pk_bf16_f32 v38, v32, v33
v_cvt_pk_bf16_f32 v39, v34, v35
v_cvt_pk_bf16_f32 v40, v32, v33
v_cvt_pk_bf16_f32 v41, v34, v35
v_min_u32 v36, -2, v36
v_permlane32_swap_b32 v40, v38
v_permlane32_swap_b32 v41, v39
s_mov_b32 exec_lo, {s(sT+1)}
s_mov_b32 exec_hi, 0
buffer_store_dwordx4 v[36:39], v24, {s(R_WS,4)}, {s(sT)} offen sc1
s_mov_b64 exec, -1
s_setprio 0""")
stamp("kvpub")
a.label("L_nokv")
for u in range(1, 8):
    h_row(u)
a(f"s_waitcnt lgkmcnt(0)\ns_barrier")
a(f"s_cmp_lt_u32 {s(sW)}, 4\ns_cbranch_scc0 L_s_q")

a(f"""s_cmp_eq_u32 {s(sPkK)}, 3
s_cbranch_scc1 L_pk_skip
s_lshl_b32 {s(sT)}, {s(sSub)}, 12
s_add_u32 {s(sT)}, {s(sT)}, {L_PKS}
v_bfe_u32 v5, v0, 4, 2
v_lshlrev_b32 v5, 3, v5
v_bfe_u32 v6, v0, 6, 2
s_cmp_eq_u32 {s(sPkK)}, 2
s_cbranch_scc1 L_pk_trwo
v_lshrrev_b32 v4, 9, v0
v_lshl_add_u32 v4, v4, 2, v6
v_lshlrev_b32 v4, 8, v4
v_bfe_u32 v6, v0, 8, 1
v_lshl_add_u32 v4, v6, 5, v4
v_add3_u32 v4, v4, v5, {s(sT)}""")
for e in range(4):
    for j in range(2):
        a(f"ds_read_b64_tr_b16 {v(32+4*e+2*j,2)}, v4 offset:{e*64+j*2048}")
a(f"""s_branch L_pk_st
L_pk_trwo:
v_lshrrev_b32 v4, 8, v0
v_lshl_add_u32 v4, v4, 3, v6
v_lshlrev_b32 v4, 7, v4
v_add3_u32 v4, v4, v5, {s(sT)}""")
for e in range(4):
    for j in range(2):
        a(f"ds_read_b64_tr_b16 {v(32+4*e+2*j,2)}, v4 offset:{e*32+j*512}")
a.label("L_pk_st")
for e in range(4):
    a(f"s_waitcnt lgkmcnt({6-2*e})\nbuffer_store_dwordx4 {v(32+4*e,4)}, v0, {s(R_WS,4)}, {s(sPkD)} offen sc1")
    if e < 3:
        a(f"s_add_u32 {s(sPkD)}, {s(sPkD)}, {s(sPkS)}")
a.label("L_pk_skip")
a(f"""v_and_b32 v4, 0x1f0, v0
v_cmp_eq_u32 vcc, 0x100, v4
v_mov_b32 v5, 0x3f803f80
v_cndmask_b32 v4, 0, v5, vcc
v_mov_b32 v5, v4""")
for r in range(128, 256, 2):
    a(f"v_pk_mov_b32 {v(r,2)}, v[4:5], v[4:5]")
a(f"""v_bfe_u32 v4, v0, 8, 1
v_bfe_u32 v5, v0, 6, 1
v_lshl_add_u32 v4, v4, 1, v5
v_lshlrev_b32 v1, 9, v4
v_bfe_u32 v4, v0, 7, 1
v_bfe_u32 v5, v0, 4, 2
v_lshl_add_u32 v4, v4, 2, v5
v_lshl_add_u32 v1, v4, 5, v1
v_lshrrev_b32 v4, 9, v0
v_lshl_add_u32 v1, v4, 4, v1
v_and_b32 v2, 0xf0, v0
v_lshl_add_u32 v2, v4, 9, v2
v_add_u32 v2, 256, v2
v_lshlrev_b32 v3, 5, v0
s_lshl_b32 {s(sT)}, {s(sW)}, 15
s_add_u32 {s(sT)}, {s(sT)}, {KV}
s_mov_b32 {s(sCnt)}, 0
L_probe:
buffer_load_dword v4, v3, {s(R_WS,4)}, {s(sT)} offen sc1
buffer_load_dword v5, v3, {s(R_WS,4)}, {s(sT)} offen offset:128 sc1
buffer_load_dword v6, v3, {s(R_WS,4)}, {s(sT)} offen offset:256 sc1
buffer_load_dword v7, v3, {s(R_WS,4)}, {s(sT)} offen offset:384 sc1""")
spin_guard()
a(f"""s_waitcnt vmcnt(0)
v_max3_u32 v4, v4, v5, v6
v_max_u32 v4, v4, v7
v_cmp_eq_u32 vcc, -1, v4
s_cbranch_vccnz L_probe""")
stamp("probe")
a(f"s_mov_b32 {s(sT+1)}, {s(sT)}")
for g in range(8):
    for kb in (2 * g, 2 * g + 1):
        a(f"buffer_load_dwordx4 {v(64+4*kb,4)}, v1, {s(R_WS,4)}, {s(sT+1)} offen offset:{2048*(kb&1)} sc1")
    a("s_mov_b32 exec_lo, 0xffff\ns_mov_b32 exec_hi, 0xffff")
    for kb in (2 * g, 2 * g + 1):
        for m in range(2):
            a(f"buffer_load_dwordx4 {v(128+8*kb+4*m,4)}, v2, {s(R_WS,4)}, {s(sT+1)} offen offset:{2048*(kb&1)+1024*m} sc1")
    a(f"s_mov_b64 exec, -1\ns_add_u32 {s(sT+1)}, {s(sT+1)}, 4096")
a("s_waitcnt vmcnt(0)")
a(f"v_max3_u32 v4, v64, v68, v72")
rest = list(range(76, 256, 4))
a(f"v_max_u32 v4, v4, {v(rest.pop())}")
for i in range(0, len(rest), 2):
    a(f"v_max3_u32 v4, v4, {v(rest[i])}, {v(rest[i+1])}")
a(f"v_cmp_eq_u32 vcc, -1, v4\ns_cbranch_vccnz L_probe")
a("s_barrier")
stamp("attn0")
if OPT["stop"] == 1:
    a("s_branch L_end")

Qr, P0, P1, Or, S0, S1, Kr, Vr = 4, 8, 12, 16, 32, 48, 64, 128


def attn_step(j, first_tile):
    C = S0 if j % 2 == 0 else S1
    N = S1 if j % 2 == 0 else S0
    e = lambda i: f"v_exp_f32 {v(C+i)}, {v(C+i)}"
    c = lambda i: f"v_cvt_pk_bf16_f32 {v(P0+i)}, {v(C+2*i)}, {v(C+2*i+1)}"
    qk = f"{MF32} {v(N,16)}, {v(Kr+4*((j+1)%16),4)}, {v(Qr,4)}, 0"
    pvp = f"{MF32} {v(Or,16)}, {v(Vr+8*((j-1)%16)+4,4)}, {v(P1,4)}, {v(Or,16)}"
    pv0 = f"{MF32} {v(Or,16)}, {v(Vr+8*j,4)}, {v(P0,4)}, {'0' if j == 0 else v(Or,16)}"
    if j == 15:
        qk = "s_waitcnt lgkmcnt(0)\n" + qk
    if j == 14:
        qk = qk + f"\nv_add_u32 v2, 1024, v2\nds_read_b128 {v(Qr,4)}, v2"
    if j == 0:
        W = [f"ds_write_b128 v3, {v(Or+4*g,4)} offset:{1024*g}" for g in range(3)]
        seq = [qk, e(0), e(1), e(2)] + ([] if first_tile else [pvp]) + [e(3), e(4), c(0), c(1), e(5), e(6), e(7), c(2), e(8), c(3), e(9), e(10)]
        seq += ([] if first_tile else W) + [pv0, e(11), c(4), e(12), e(13), c(5), e(14), e(15), c(6), c(7)]
        if not first_tile:
            seq += ["s_waitcnt lgkmcnt(0)", "s_barrier"]
    else:
        seq = [qk, e(0), e(1), e(2), e(3), e(4), c(0), c(1), e(5), pvp, e(6), e(7), c(2), e(8), c(3), e(9), e(10), e(11), pv0,
               c(4), e(12), e(13), c(5), e(14), e(15), c(6), c(7)]
        if j == 3 and not first_tile:
            seq += ["s_barrier"]
        if j == 13 and first_tile:
            seq += ["s_barrier"]
    a("\n".join(seq))


a(f"""v_add_u32 v2, {L_Q}, v0
s_mul_i32 {s(sT)}, {s(sW)}, 3072
s_add_u32 {s(sT)}, {s(sT)}, {L_PART}
v_add_u32 v3, {s(sT)}, v0
ds_read_b128 {v(Qr,4)}, v2
s_waitcnt lgkmcnt(0)
{MF32} {v(S0,16)}, {v(Kr,4)}, {v(Qr,4)}, 0""")
for j in range(16):
    attn_step(j, True)
a(f"s_mov_b32 {s(sI)}, 1\n.p2align 6\nL_attn:")
for j in range(16):
    attn_step(j, False)
a(f"s_add_u32 {s(sI)}, {s(sI)}, 1\ns_cmp_lt_u32 {s(sI)}, 8\ns_cbranch_scc1 L_attn")
a(f"{MF32} {v(Or,16)}, {v(Vr+8*15+4,4)}, {v(P1,4)}, {v(Or,16)}")
for g in range(3):
    a(f"ds_write_b128 v3, {v(Or+4*g,4)} offset:{1024*g}")
a("s_waitcnt lgkmcnt(0)\ns_barrier")
stamp("attn1")
a("s_barrier")
a.label("L_a_post")
a(f"v_mov_b32 v8, {L_BAD}\nds_read_b32 v8, v8\ns_waitcnt lgkmcnt(0)\nv_readfirstlane_b32 {s(sT)}, v8\ns_cmp_lg_u32 {s(sT)}, {s(sSafe)}\ns_cbranch_scc1 L_a_safe")
a("s_barrier")
if OPT["stop"] == 2:
    a("s_branch L_end")
a(f"""s_lshr_b32 {s(sT)}, {s(sSlot)}, 4
s_lshl_b32 {s(sT)}, {s(sT)}, 2
s_add_u32 {s(sT)}, {s(sT)}, {s(sW)}
s_lshl_b32 {s(sT+1)}, {s(sT)}, 6
s_add_u32 {s(sT+1)}, {s(sT+1)}, {FH2}
s_lshl_b32 {s(sT+2)}, {s(sT)}, 15
s_add_u32 {s(sT+2)}, {s(sT+2)}, {H2}
s_mul_i32 {s(sT+3)}, {s(sT)}, {86*1024}
s_lshl_b32 {s(sT+4)}, {s(sJ16)}, 11
s_add_u32 {s(sT+3)}, {s(sT+3)}, {s(sT+4)}
s_add_u32 {s(sT+3)}, {s(sT+3)}, {HID}
s_lshl_b32 {s(sT+4)}, {s(sT)}, 8
s_lshl_b32 {s(sT+5)}, {s(sJ16)}, 2
s_add_u32 {s(sT+4)}, {s(sT+4)}, {s(sT+5)}
s_add_u32 {s(sT+4)}, {s(sT+4)}, {FHID}
v_lshrrev_b32 v1, 2, v0
v_add_u32 v2, 65536, v0""")
NR = 8
for i in range(NR - 1):
    a(f"ds_read_b128 {v(64+4*i,4)}, v0 offset:{L_W1 + 1024*i}")
poll_flags(1, 4, s(sT+1), 0xffff)
stamp("h2rdy")
for ks in range(32):
    a(f"buffer_load_dwordx4 {v(128+4*ks,4)}, v0, {s(R_WS,4)}, {s(sT+2)} offen offset:{1024*(ks&3)} sc1")
    if ks & 3 == 3 and ks < 31:
        a(f"s_add_u32 {s(sT+2)}, {s(sT+2)}, 4096")
a("s_setprio 2")


def silu_ops(A):
    ops = []
    for i in range(16):
        ops.append(f"v_exp_f32 {v(16+i)}, {v(A+i)}")
    for i in range(16):
        ops.append(f"v_add_f32 {v(16+i)}, 1.0, {v(16+i)}")
    for i in range(16):
        ops.append(f"v_rcp_f32 {v(16+i)}, {v(16+i)}")
    for i in range(16):
        ops.append(f"v_mul_f32 {v(16+i)}, {v(A+i)}, {v(16+i)}")
    for i in range(8):
        ops.append(f"v_cvt_pk_bf16_f32 {v(8+i)}, {v(16+2*i)}, {v(17+2*i)}")
    return ops


def hid_store(r):
    return [f"buffer_store_dwordx4 v[8:11], v0, {s(R_WS,4)}, {s(sT+3)} offen sc1",
            f"buffer_store_dwordx4 v[12:15], v0, {s(R_WS,4)}, {s(sT+3)} offen offset:1024 sc1",
            f"s_add_u32 {s(sT+3)}, {s(sT+3)}, 32768"]


def hid_flag():
    a("s_waitcnt vmcnt(0)")
    store_flag(4, s(sT+4))
    a(f"s_add_u32 {s(sT+4)}, {s(sT+4)}, 64")


def ffn1_round(r):
    A = 32 if r % 2 == 0 else 48
    fill = []
    if r > 0:
        fill = silu_ops(48 if r % 2 == 0 else 32) + hid_store(r - 1)
    cost = lambda o: 8 if o.startswith(("v_exp", "v_rcp")) else 4
    for ks in range(32):
        g = 32 * r + ks
        nxt = g + NR - 1
        if nxt < 96:
            off = L_W1 + 1024 * nxt
            a(f"ds_read_b128 {v(64+4*(nxt%NR),4)}, {'v0' if off < 65536 else 'v2'} offset:{off & 65535}")
        out = min(NR - 1, 95 - g)
        w = f"s_waitcnt lgkmcnt({out})"
        if r == 0:
            w = f"s_waitcnt vmcnt({31-ks}) lgkmcnt({out})"
        a(w)
        a(f"{MF32} {v(A,16)}, {v(64+4*(g%NR),4)}, {v(128+4*ks,4)}, {'0' if ks == 0 else v(A,16)}")
        if ks == 14 and r == 2:
            hid_flag()
        elif ks >= 3:
            bud = 16
            while fill and bud >= cost(fill[0]):
                bud -= cost(fill[0])
                a(fill.pop(0))
    for o in fill:
        a(o)


ffn1_round(0)
ffn1_round(1)
a(f"s_cmp_lt_u32 {s(sJ16)}, 11\ns_cbranch_scc0 L_f1_two")
ffn1_round(2)
a("\n".join(silu_ops(32)[:64]))
hid_flag()
a("\n".join(silu_ops(32)[64:] + hid_store(2)))
hid_flag()
a("s_branch L_f1_done")
a.label("L_f1_two")
a("\n".join(silu_ops(48)[:64]))
hid_flag()
a("\n".join(silu_ops(48)[64:] + hid_store(1)))
hid_flag()
a.label("L_f1_done")
a("s_setprio 0")
stamp("ffn1")
a("s_waitcnt lgkmcnt(0)\ns_barrier")
a("s_branch L_final")

a.label("L_s_q")
a(f"""v_bfe_u32 v4, v0, 4, 5
v_mul_u32_u24 v1, {HROW}, v4
v_lshrrev_b32 v5, 9, v0
v_lshl_add_u32 v1, v5, 4, v1
s_and_b32 {s(sT)}, {s(sSub)}, 1
s_mul_i32 {s(sT+1)}, {s(sT)}, {32*HROW}
v_add_u32 v1, {s(sT+1)}, v1""")
NQ = 8
for i in range(NQ - 1):
    a(f"ds_read_b128 {v(64+4*i,4)}, v1 offset:{L_H + 32*i}")
a(f"""v_lshrrev_b32 v6, 3, v4
s_lshl_b32 {s(sT)}, {s(sT)}, 2
v_add_u32 v6, {s(sT)}, v6
v_add_u32 v7, {s(sJ8)}, v6
v_and_b32 v7, 7, v7
v_lshlrev_b32 v7, 13, v7
v_sub_u32 v6, 8, v6
v_and_b32 v6, 7, v6
v_lshl_add_u32 v7, v6, 10, v7
v_and_b32 v6, 0x70, v0
v_lshl_add_u32 v6, v5, 9, v6
s_lshr_b32 {s(sT)}, {s(sSub)}, 1
s_lshl_b32 {s(sT)}, {s(sT)}, 8
v_add_u32 v6, {s(sT)}, v6
v_add_u32 v2, v7, v6
v_add_u32 v3, {L_Q}, v6
s_lshl_b32 {s(sT+2)}, {s(sG8)}, 16
s_add_u32 {s(sT+2)}, {s(sT+2)}, {QB}""")
for ks in range(32):
    nxt = ks + NQ - 1
    if nxt < 32:
        a(f"ds_read_b128 {v(64+4*(nxt%NQ),4)}, v1 offset:{L_H + 32*nxt}")
    a(f"s_waitcnt lgkmcnt({min(NQ-1, 31-ks)})")
    a(f"{MF32} v[32:47], {v(128+4*ks,4)}, {v(64+4*(ks%NQ),4)}, {'0' if ks == 0 else 'v[32:47]'}")
a(f"v_mov_b32 v4, {f32(0.25*LOG2E)}")
for i in range(8):
    a(f"v_pk_mul_f32 {v(32+2*i,2)}, {v(32+2*i,2)}, v[4:5] op_sel:[0,0] op_sel_hi:[1,0]")
for i in range(8):
    a(f"v_cvt_pk_bf16_f32 {v(48+i)}, {v(32+2*i)}, {v(33+2*i)}")
a(f"""s_bitcmp1_b32 {s(sSub)}, 0
s_cbranch_scc1 L_q_noown
s_mov_b32 exec_lo, 0xff
s_mov_b32 exec_hi, 0xff
ds_write_b128 v3, v[48:51]
ds_write_b128 v3, v[52:55] offset:128
s_mov_b64 exec, -1
L_q_noown:
buffer_store_dwordx4 v[48:51], v2, {s(R_WS,4)}, {s(sT+2)} offen sc1
buffer_store_dwordx4 v[52:55], v2, {s(R_WS,4)}, {s(sT+2)} offen offset:128 sc1
s_waitcnt lgkmcnt(0)""")
stamp("qgemm")
a(f"""s_lshl_b32 {s(sT)}, {s(sSlot)}, 4
s_lshl_b32 {s(sT+1)}, {s(sSub)}, 2
s_add_u32 {s(sT)}, {s(sT)}, {s(sT+1)}
s_add_u32 {s(sT)}, {s(sT)}, {FQ}
s_waitcnt vmcnt(0)""")
store_flag(4, s(sT))
a("s_barrier")
a(f"s_cmp_lt_u32 {s(sW)}, 6\ns_cbranch_scc0 L_s_nopub")
mod_publish("w", 28, 4)
a.label("L_s_nopub")
if OPT["stop"] == 1:
    a("s_branch L_end")
a(f"""v_lshrrev_b32 v1, 2, v0
s_lshl_b32 {s(sT)}, {s(sG8)}, 7
s_add_u32 {s(sT)}, {s(sT)}, {FQ}""")
poll_flags(1, 4, s(sT), 0xffffffff)
a(f"""s_lshl_b32 {s(sT)}, {s(sSlot)}, 13
s_lshl_b32 {s(sT+1)}, {s(sSub)}, 11
s_add_u32 {s(sT)}, {s(sT)}, {s(sT+1)}
s_add_u32 {s(sT)}, {s(sT)}, {QB}
buffer_load_dwordx4 v[4:7], v0, {s(R_WS,4)}, {s(sT)} offen sc1
buffer_load_dwordx4 v[8:11], v0, {s(R_WS,4)}, {s(sT)} offen offset:1024 sc1
s_add_u32 {s(sT+1)}, {s(sT+1)}, {L_Q}
v_add_u32 v1, {s(sT+1)}, v0
s_waitcnt vmcnt(1)
ds_write_b128 v1, v[4:7]
s_waitcnt vmcnt(0)
ds_write_b128 v1, v[8:11] offset:1024
s_waitcnt lgkmcnt(0)
s_barrier""")
a(f"""s_mov_b32 {s(sT+6)}, 0x0c0c0400
s_mov_b32 {s(sT+7)}, 0x04000c0c
s_lshl_b32 {s(sT)}, {s(sSub)}, 11
s_add_u32 {s(sT)}, {s(sT)}, {MODG + 4096}
s_add_u32 {s(sT+1)}, {s(sT)}, 12288
s_mov_b32 {s(sCnt)}, 0
L_poll3:
buffer_load_dwordx4 v[4:7], v0, {s(R_WS,4)}, {s(sT)} offen sc1
buffer_load_dwordx4 v[8:11], v0, {s(R_WS,4)}, {s(sT)} offen offset:1024 sc1
buffer_load_dwordx4 v[12:15], v0, {s(R_WS,4)}, {s(sT+1)} offen sc1
buffer_load_dwordx4 v[16:19], v0, {s(R_WS,4)}, {s(sT+1)} offen offset:1024 sc1""")
spin_guard()
a("s_waitcnt vmcnt(0)")
for i in range(4):
    tag_check(4 + 4 * i, 20, i == 0)
a(f"v_cmp_ne_u32 vcc, 0, v20\ns_cbranch_vccnz L_poll3")
for i in range(4):
    a(f"v_pk_add_f32 {v(4+2*i,2)}, {v(4+2*i,2)}, {v(12+2*i,2)}")
round_bf16(4, 8, 12)
a(f"""s_cmp_eq_u32 {s(sSub)}, 2
s_cselect_b32 {s(sT)}, 1.0, 0
s_cmp_eq_u32 {s(sSub)}, 0
s_cselect_b32 {s(sT+1)}, 1.0, {f32(-LOG2E)}
s_cmp_eq_u32 {s(sSub)}, 3
s_cselect_b32 {s(sT+1)}, {f32(-1.0/LOG2E)}, {s(sT+1)}""")
for i in range(8):
    a(f"v_add_f32 {v(4+i)}, {s(sT)}, {v(4+i)}")
round_bf16(4, 8, 12)
for i in range(8):
    a(f"v_mul_f32 {v(4+i)}, {s(sT+1)}, {v(4+i)}")
a(f"""s_lshl_b32 {s(sT)}, {s(sSub)}, 11
s_add_u32 {s(sT)}, {s(sT)}, {L_MOD2}
v_add_u32 v1, {s(sT)}, v0
ds_write_b128 v1, v[4:7]
ds_write_b128 v1, v[8:11] offset:1024""")
vO, vLs, vON, vB0, vB1, vN4 = 48, 49, 50, 51, 52, 53
WA, ACC, BF = 64, 16, 32
a(f"""v_bfe_u32 v4, v0, 4, 3
s_lshl_b32 {s(sT)}, {s(sSub)}, 3
v_add_u32 v5, {s(sT)}, v4
v_lshlrev_b32 v5, 4, v5
v_add_u32 {v(vLs)}, {L_PART + 2048}, v5
v_lshrrev_b32 v6, 9, v0
v_lshl_add_u32 v5, v6, 10, v5
v_bfe_u32 v7, v0, 8, 1
v_lshl_add_u32 v5, v7, 9, v5
v_bfe_u32 v7, v0, 7, 1
v_lshl_add_u32 v5, v7, 3, v5
v_add_u32 {v(vO)}, {L_PART}, v5
v_lshlrev_b32 v5, 7, v6
v_lshl_add_u32 v5, v4, 4, v5
v_bfe_u32 v8, v0, 7, 2
v_lshl_add_u32 v5, v8, 2, v5
s_lshl_b32 {s(sT)}, {s(sSub)}, 8
s_add_u32 {s(sT)}, {s(sT)}, {L_ON}
v_add_u32 {v(vON)}, {s(sT)}, v5
v_lshrrev_b32 v5, 8, v0
v_lshlrev_b32 v6, 7, v5
v_lshl_add_u32 v6, v4, 4, v6
v_add_u32 v6, {L_ON}, v6
v_mov_b32 v8, {L_ZERO}
v_cmp_eq_u32 vcc, 0, v7
v_cndmask_b32 {v(vB0)}, v8, v6, vcc
v_cndmask_b32 {v(vB1)}, v6, v8, vcc
v_lshlrev_b32 v6, 8, v7
v_lshl_add_u32 v6, v5, 4, v6
s_lshl_b32 {s(sT)}, {s(sSub)}, 9
v_add_u32 {v(vN4)}, {s(sT)}, v6""")
a(f"""v_lshrrev_b32 v6, 1, {v(vN4)}
v_lshl_add_u32 v6, v4, 10, v6
s_lshl_b32 {s(sT)}, {s(sSlot)}, 13""")
for j in range(4):
    a(f"buffer_load_dwordx2 {v(56+2*j,2)}, v6, {s(R_X,4)}, {s(sT)} offen offset:{32*j}")
a("s_waitcnt vmcnt(0)")
for j in range(8):
    unpack(128 + 2 * j, 129 + 2 * j, 56 + j)
a.label("L_s_loop0")
for i in range(16):
    a(f"v_mov_b32 {v(ACC+i)}, 0")
a(f"""s_mov_b64 {s(sBad,2)}, 0
s_mov_b32 {s(sI)}, 0
s_mov_b32 {s(sLN)}, {f32(2.0**-40)}
s_mov_b32 {s(sLN+1)}, {f32(2.0**60)}
s_setprio 2""")


def wo_loads():
    a(f"""s_add_u32 {s(sT)}, {s(sI)}, {s(sJ8)}
    s_and_b32 {s(sT)}, {s(sT)}, 7
    s_lshl_b32 {s(sT)}, {s(sT)}, 16
    s_lshl_b32 {s(sT+1)}, {s(sSub)}, 14
    s_add_u32 {s(sT)}, {s(sT)}, {s(sT+1)}
    s_add_u32 {s(sT)}, {s(sT)}, {WOP}""")
    for f in range(16):
        a(f"buffer_load_dwordx4 {v(WA+4*f,4)}, v0, {s(R_WS,4)}, {s(sT)} offen offset:{1024*(f&3)}")
        if f & 3 == 3 and f < 15:
            a(f"s_add_u32 {s(sT)}, {s(sT)}, 4096")


a.label("L_s_loop")
a("s_waitcnt lgkmcnt(0)\ns_barrier")
for w in range(4):
    a(f"ds_read_b32 {v(12+w)}, {v(vLs)} offset:{3072*w}")
for w in range(4):
    a(f"ds_read_b64 {v(4+2*w,2)}, {v(vO)} offset:{3072*w}")
a(f"s_cmp_eq_u32 {s(sI)}, 0\ns_cbranch_scc0 L_s_nf")
wo_loads()
a.label("L_s_nf")
a(f"""s_waitcnt lgkmcnt(4)
v_pk_add_f32 v[12:13], v[12:13], v[14:15]
v_add_f32 v12, v12, v13
v_rcp_f32 v14, v12
s_waitcnt lgkmcnt(0)
v_pk_add_f32 v[4:5], v[4:5], v[6:7]
v_pk_add_f32 v[8:9], v[8:9], v[10:11]
v_cmp_nle_f32 vcc, {s(sLN)}, v12
v_pk_add_f32 v[4:5], v[4:5], v[8:9]
s_or_b64 {s(sBad,2)}, {s(sBad,2)}, vcc
v_cmp_nge_f32 vcc, {s(sLN+1)}, v12
v_pk_mul_f32 v[4:5], v[4:5], v[14:15] op_sel:[0,0] op_sel_hi:[1,0]
s_or_b64 {s(sBad,2)}, {s(sBad,2)}, vcc
v_cvt_pk_bf16_f32 v4, v4, v5
ds_write_b32 {v(vON)}, v4
s_cmp_eq_u64 {s(sBad,2)}, 0
s_cbranch_scc1 L_s_ok
v_mov_b32 v4, {L_BAD}
v_mov_b32 v5, 1
ds_write_b32 v4, v5
L_s_ok:
s_waitcnt lgkmcnt(0)
s_barrier""")
for ks in range(2):
    for c in range(2):
        a(f"ds_read_b128 {v(BF+8*ks+4*c,4)}, {v(vB0+c)} offset:{512*ks}")
n = 0
for ks in range(2):
    for c in range(2):
        a(f"s_waitcnt vmcnt({12-4*n}) lgkmcnt({3-n})")
        n += 1
        for j in range(4):
            a(f"{MF16} {v(ACC+4*j,4)}, {v(WA+4*(8*ks+4*c+j),4)}, {v(BF+8*ks+4*c,4)}, {v(ACC+4*j,4)}")
a(f"s_add_u32 {s(sI)}, {s(sI)}, 1\ns_cmp_lt_u32 {s(sI)}, 8\ns_cbranch_scc0 L_s_done")
a(f"""s_cmp_lt_u32 {s(sI)}, 7
s_cbranch_scc0 L_s_consts
s_sub_u32 {s(sT)}, {s(sI)}, 1
s_lshr_b32 {s(sT+1)}, {s(sT)}, 1
s_lshl_b32 {s(sT+1)}, {s(sT+1)}, 4
s_add_u32 {s(sT+1)}, {s(sT+1)}, {s(sJ16)}
s_min_u32 {s(sT+1)}, {s(sT+1)}, 43
s_lshl_b32 {s(sT+1)}, {s(sT+1)}, 15
s_and_b32 {s(sT+2)}, {s(sT)}, 1
s_lshl_b32 {s(sT+2)}, {s(sT+2)}, 14
s_lshl_b32 {s(sT+3)}, {s(sSub)}, 12
s_add_u32 {s(sT+2)}, {s(sT+2)}, {s(sT+3)}
s_add_u32 {s(sT+1)}, {s(sT+1)}, {s(sT+2)}
s_add_u32 {s(sT+1)}, {s(sT+1)}, {W1P}
s_lshl_b32 {s(sT)}, {s(sT)}, 14
s_add_u32 m0, {s(sT)}, {s(sT+3)}""")
for q in range(4):
    a(f"buffer_load_dwordx4 v0, {s(R_WS,4)}, {s(sT+1)} offen offset:{1024*q} lds")
a(f"s_branch L_s_next\nL_s_consts:\nv_add_u32 v4, {L_MOD2}, {v(vN4)}")
for j in range(4):
    a(f"ds_read_b128 {v(144+4*j,4)}, v4 offset:{64*j}\nds_read_b128 {v(176+4*j,4)}, v4 offset:{2048+64*j}\nds_read_b128 {v(160+4*j,4)}, v4 offset:{4096+64*j}")
a(f"""s_mul_i32 {s(sT)}, {s(sJ8)}, {2*86*1024}
s_lshl_b32 {s(sT+1)}, {s(sSub)}, 13
s_add_u32 {s(sT)}, {s(sT)}, {s(sT+1)}
s_add_u32 {s(sPkD)}, {s(sT)}, {W2P}
s_add_u32 {s(sPkS)}, {s(sPkD)}, {86*1024}""")
for k in range(8):
    if k == 4:
        a(f"s_add_u32 {s(sT)}, {s(sPkD)}, 4096\ns_add_u32 {s(sT+1)}, {s(sPkS)}, 4096")
    for cb in range(2):
        base = (sPkD, sPkS)[cb] if k < 4 else sT + cb
        a(f"buffer_load_dwordx4 {v(192+8*k+4*cb,4)}, v0, {s(R_WS,4)}, {s(base)} offen offset:{1024*(k&3)}")
a.label("L_s_next")
wo_loads()
a("s_branch L_s_loop")
a.label("L_s_done")
a(f"v_mov_b32 v8, {L_BAD}\nds_read_b32 v8, v8\ns_waitcnt lgkmcnt(0)\nv_readfirstlane_b32 {s(sT)}, v8\ns_cmp_lg_u32 {s(sT)}, {s(sSafe)}\ns_cbranch_scc1 L_s_safe")
stamp("wo")
for i in range(8):
    a(f"v_pk_fma_f32 {v(ACC+2*i,2)}, {v(ACC+2*i,2)}, {v(144+2*i,2)}, {v(128+2*i,2)}")
a(f"v_pk_add_f32 v[4:5], {v(ACC,2)}, {v(ACC+2,2)}\nv_pk_mul_f32 v[6:7], {v(ACC,2)}, {v(ACC,2)}")
for i in range(1, 8):
    if i > 1:
        a(f"v_pk_add_f32 v[4:5], v[4:5], {v(ACC+2*i,2)}")
    a(f"v_pk_fma_f32 v[6:7], {v(ACC+2*i,2)}, {v(ACC+2*i,2)}, v[6:7]")
a(f"""v_add_f32 v4, v4, v5
v_add_f32 v6, v6, v7
v_bfe_u32 v9, v0, 4, 3
v_lshl_add_u32 v10, v9, 11, {v(vN4)}
v_permlane32_swap_b32 v4, v6
v_add_f32 v4, v4, v6
v_lshrrev_b32 v8, 9, v0
v_lshlrev_b32 v8, 7, v8
v_add_f32_dpp v4, v4, v4 row_ror:8 row_mask:0xf bank_mask:0xf
v_lshl_add_u32 v8, v9, 4, v8
v_mov_b32 v5, v4
s_lshl_b32 {s(sT)}, {s(sSub)}, 2
s_add_u32 {s(sT)}, {s(sT)}, {L_STAT}
v_add_u32 v8, {s(sT)}, v8
v_permlane16_swap_b32 v4, v5
v_add_f32 v4, v4, v5
ds_write_b32 v8, v4
s_lshl_b32 {s(sT)}, {s(sSlot)}, 14
s_add_u32 {s(sT)}, {s(sT)}, {X1}
v_lshlrev_b32 v9, 4, v9
v_add_u32 v8, {L_STAT}, v9
s_waitcnt lgkmcnt(0)
s_barrier""")
a(f"ds_read_b128 v[4:7], v8\nds_read_b128 v[12:15], v8 offset:128")
for j in range(4):
    a(f"buffer_store_dwordx4 {v(ACC+4*j,4)}, v10, {s(R_WS,4)}, {s(sT)} offen offset:{64*j} sc1")
a(f"""s_lshr_b32 {s(sT)}, {s(sSlot)}, 2
s_lshl_b32 {s(sT)}, {s(sT)}, 15
s_and_b32 {s(sT+1)}, {s(sSlot)}, 3
s_lshl_b32 {s(sT+1)}, {s(sT+1)}, 7
s_add_u32 {s(sT)}, {s(sT)}, {s(sT+1)}
s_lshl_b32 {s(sT+1)}, {s(sSub)}, 13
s_add_u32 {s(sT)}, {s(sT)}, {s(sT+1)}
s_add_u32 {s(sT)}, {s(sT)}, {H2}
v_bfe_u32 v10, v0, 7, 1
v_lshl_add_u32 v9, v10, 12, v9
v_lshrrev_b32 v10, 8, v0
v_lshl_add_u32 v9, v10, 9, v9
v_mov_b32 v10, {f32(1.0/512)}
v_mov_b32 v11, {f32(1e-5)}
s_waitcnt lgkmcnt(1)
v_pk_add_f32 v[4:5], v[4:5], v[6:7]
s_waitcnt lgkmcnt(0)
v_pk_add_f32 v[12:13], v[12:13], v[14:15]
v_add_f32 v4, v4, v5
v_add_f32 v12, v12, v13
v_mul_f32 v4, v10, v4
v_fma_f32 v12, v12, v10, v11
v_fma_f32 v12, -v4, v4, v12
v_max_f32 v12, v11, v12
v_rsq_f32 v6, v12
v_mul_f32_e64 v7, v4, -v6""")
for i in range(8):
    a(f"v_pk_fma_f32 {v(32+2*i,2)}, {v(ACC+2*i,2)}, v[6:7], v[6:7] op_sel:[0,0,1] op_sel_hi:[1,0,1]")
for i in range(8):
    a(f"v_pk_fma_f32 {v(32+2*i,2)}, {v(32+2*i,2)}, {v(160+2*i,2)}, {v(176+2*i,2)}")
for i in range(8):
    a(f"v_cvt_pk_bf16_f32 {v(48+i)}, {v(32+2*i)}, {v(33+2*i)}")
a(f"""buffer_store_dwordx4 v[48:51], v9, {s(R_WS,4)}, {s(sT)} offen sc1
buffer_store_dwordx4 v[52:55], v9, {s(R_WS,4)}, {s(sT)} offen offset:2048 sc1
s_lshl_b32 {s(sT)}, {s(sSlot)}, 4
s_lshl_b32 {s(sT+1)}, {s(sSub)}, 2
s_add_u32 {s(sT)}, {s(sT)}, {s(sT+1)}
s_add_u32 {s(sT)}, {s(sT)}, {FH2}
s_waitcnt vmcnt(0)""")
store_flag(4, s(sT))
stamp("h2pub")
a("s_setprio 0")
if OPT["stop"] == 2:
    a("s_branch L_end")
F2 = 4
sHB = sLN
sFl = sLN + 2
sW2 = (sPkD, sPkS)
steps = [(0, k) for k in range(8)] + [(1, k) for k in range(8)] + [(2, k) for k in range(6)]
a(f"""s_mul_i32 {s(sHB)}, {s(sG8)}, {2*86*1024}
s_lshl_b32 {s(sT)}, {s(sSub)}, 13
s_add_u32 {s(sHB)}, {s(sHB)}, {s(sT)}
s_add_u32 {s(sHB)}, {s(sHB)}, {HID}
s_add_u32 {s(sHB+1)}, {s(sHB)}, {86*1024}
s_lshl_b32 {s(sFl)}, {s(sG8)}, 9
s_add_u32 {s(sFl)}, {s(sFl)}, {FHID}
s_lshl_b32 {s(sFl+1)}, {s(sSub)}, 11
s_sub_u32 {s(sFl+1)}, {64*1024}, {s(sFl+1)}
v_bfe_u32 v2, v0, 4, 2
v_bfe_u32 v1, v0, 6, 1
v_lshlrev_b32 v1, 8, v1
v_lshl_add_u32 v1, v2, 2, v1""")
free = list(range(68, 192, 4))
loc = {}
for k in range(8):
    for cb in range(2):
        loc[("W", 0, k, cb)] = 192 + 8 * k + 4 * cb
outstanding = []


def f2_load(kind, r, k, x):
    reg = free.pop(0)
    loc[(kind, r, k, x)] = reg
    base = (sW2 if kind == "W" else (sHB, sHB + 1))[x]
    off = (32 * r + k) * 1024 if r < 2 else k * 1024
    hi, lo = off & ~4095, off & 4095
    if r < 2:
        a(f"s_add_u32 {s(sT)}, {s(base)}, {hi}")
    else:
        a(f"s_add_u32 {s(sT)}, {s(base)}, {s(sFl+1)}")
        if hi:
            a(f"s_add_u32 {s(sT)}, {s(sT)}, {hi}")
    a(f"buffer_load_dwordx4 {v(reg,4)}, v0, {s(R_WS,4)}, {s(sT)} offen offset:{lo}{' sc1' if kind == 'B' else ''}")
    outstanding.append((kind, r, k, x))


def f2_poll(r):
    if r < 2:
        a(f"s_lshl_b32 {s(sT)}, {s(sSub)}, 4\ns_add_u32 {s(sT)}, {s(sT)}, {s(sFl)}\ns_add_u32 {s(sT)}, {s(sT)}, {64*r}")
        poll_flags(1, 3, s(sT), 0xff)
    else:
        L = a.uid("L_pf")
        a(f"""s_mul_i32 {s(sT)}, {s(sSub)}, 12
        s_add_u32 {s(sT)}, {s(sT)}, {s(sFl)}
        s_add_u32 {s(sT)}, {s(sT)}, 128
        s_cmp_eq_u32 {s(sSub)}, 3
        s_cselect_b32 exec_lo, 0x33, 0x77
        s_mov_b32 exec_hi, 0
        s_mov_b32 {s(sCnt)}, 0""")
        a.label(L)
        a(f"buffer_load_dword v3, v1, {s(R_WS,4)}, {s(sT)} offen sc1")
        spin_guard()
        a(f"s_waitcnt vmcnt(0)\nv_cmp_ne_u32 vcc, {s(sTag)}, v3\ns_cbranch_vccnz {L}\ns_mov_b64 exec, -1")
    outstanding.clear()


pend = []
for r, k in steps:
    for x in range(2):
        if r > 0:
            pend.append(("W", r, k, x))
    for x in range(2):
        pend.append(("B", r, k, x))
pre = [p for p in pend if p[0] == "W"][:15]
for p in pre:
    f2_load(*p)
    pend.remove(p)
polled = set()
f2_poll(0)
polled.add(0)
stamp("hid0")
while free and pend and pend[0][1] == 0:
    f2_load(*pend.pop(0))
f2_poll(1)
polled.add(1)
POLL2_AT = (1, 3)
first = {0: True, 1: True, 2: True, 3: True}
for r, k in steps:
    if (r, k) == POLL2_AT:
        f2_poll(2)
        polled.add(2)
        while free and pend:
            f2_load(*pend.pop(0))
    if (r, k) == (2, 4):
        a(f"s_cmp_eq_u32 {s(sSub)}, 3\ns_cbranch_scc1 L_f2_done")
    needk = [(kind, r, k, x) for kind in "WB" for x in range(2)]
    idx = [outstanding.index(n) for n in needk if n in outstanding]
    assert all(n in loc for n in needk), (r, k)
    if idx:
        m = max(idx)
        a(f"s_waitcnt vmcnt({len(outstanding) - 1 - m})")
        del outstanding[:m + 1]
    for rb in range(2):
        for cb in range(2):
            b = 2 * rb + cb
            A = F2 + 16 * b
            a(f"{MF32} {v(A,16)}, {v(loc[('W', r, k, cb)],4)}, {v(loc[('B', r, k, rb)],4)}, {'0' if first[b] else v(A,16)}")
            first[b] = False
    for n in needk:
        free.append(loc[n])
    i = 0
    while free and i < len(pend):
        p = pend[i]
        if p[0] == "B" and p[1] not in polled:
            i += 1
            continue
        f2_load(*pend.pop(i))
assert not pend
a.label("L_f2_done")
a("s_waitcnt vmcnt(0)")
stamp("ffn2")
a("s_barrier")
RS = 1088
a(f"s_mul_i32 {s(sT)}, {s(sSub)}, {16*RS}\nv_add_u32 v1, {s(sT)}, v0")
for b in range(4):
    for g in range(4):
        a(f"ds_write_b128 v1, {v(F2+16*b+4*g,4)} offset:{L_RED + (4*b+g)*RS}")
a.label("L_final")
a(f"""v_lshrrev_b32 v4, 7, v0
v_bfe_u32 v5, v0, 4, 3
s_lshl_b32 {s(sT)}, {s(sG8)}, 6
s_lshl_b32 {s(sT+1)}, {s(sW)}, 3
s_add_u32 {s(sT)}, {s(sT)}, {s(sT+1)}
s_lshl_b32 {s(sT+2)}, {s(sT)}, 10
s_lshl_b32 {s(sT+3)}, {s(sJ8)}, 7
s_add_u32 {s(sT+2)}, {s(sT+2)}, {s(sT+3)}
s_lshl_b32 {s(sT+4)}, {s(sT+2)}, 1
s_add_u32 {s(sT+4)}, {s(sT+4)}, {X1}
v_lshlrev_b32 v70, 10, v4
v_lshl_add_u32 v70, v5, 4, v70
v_lshlrev_b32 v71, 1, v70
buffer_load_dwordx4 v[72:75], v71, {s(R_WS,4)}, {s(sT+4)} offen sc1
buffer_load_dwordx4 v[76:79], v71, {s(R_WS,4)}, {s(sT+4)} offen offset:16 sc1
s_lshl_b32 {s(sT+3)}, {s(sJ8)}, 8
s_add_u32 {s(sT+3)}, {s(sT+3)}, {L_MOD2 + 6144}
v_lshlrev_b32 v68, 5, v5
v_add_u32 v68, {s(sT+3)}, v68
ds_read_b128 v[80:83], v68
ds_read_b128 v[84:87], v68 offset:16
v_mul_u32_u24 v69, {RS}, v5
v_lshl_add_u32 v69, v4, 4, v69
s_lshr_b32 {s(sT+3)}, {s(sW)}, 2
s_mul_i32 {s(sT+3)}, {s(sT+3)}, {8*RS}
s_lshl_b32 {s(sT+5)}, {s(sSub)}, 7
s_add_u32 {s(sT+3)}, {s(sT+3)}, {s(sT+5)}
v_add_u32 v69, {s(sT+3)}, v69
s_waitcnt lgkmcnt(0)
s_barrier""")
for q in range(4):
    for h in range(2):
        a(f"ds_read_b128 {v(88+8*q+4*h,4)}, v69 offset:{L_RED + q*16*RS + h*512}")
a("s_waitcnt lgkmcnt(4)")
for i in range(4):
    a(f"v_pk_add_f32 {v(88+2*i,2)}, {v(88+2*i,2)}, {v(96+2*i,2)}")
a("s_waitcnt lgkmcnt(0)")
for i in range(4):
    a(f"v_pk_add_f32 {v(104+2*i,2)}, {v(104+2*i,2)}, {v(112+2*i,2)}")
for i in range(4):
    a(f"v_pk_add_f32 {v(88+2*i,2)}, {v(88+2*i,2)}, {v(104+2*i,2)}")
a("s_waitcnt vmcnt(0)")
for i in range(4):
    a(f"v_pk_fma_f32 {v(88+2*i,2)}, {v(88+2*i,2)}, {v(80+2*i,2)}, {v(72+2*i,2)}")
for i in range(4):
    a(f"v_cvt_pk_bf16_f32 {v(72+i)}, {v(88+2*i)}, {v(89+2*i)}")
a(f"buffer_store_dwordx4 v[72:75], v70, {s(R_OUT,4)}, {s(sT+2)} offen")
stamp("done")
a.label("L_end")
a("s_mov_b64 exec, -1")
a(f"s_or_b32 {s(sT)}, s2, {s(sW)}\ns_cmp_eq_u32 {s(sT)}, 0\ns_cbranch_scc0 L_noep")
store_flag(4, EPOCH)
a.label("L_noep")
if DIAG:
    a("s_waitcnt lgkmcnt(0)\nv_mov_b32 v4, 0")
    for k in range(12):
        a(f"v_writelane_b32 v4, {s(4+2*k)}, {k}")
    a(f"""s_lshl_b32 {s(sT)}, s2, 3
    s_add_u32 {s(sT)}, {s(sT)}, {s(sW)}
    s_lshl_b32 {s(sT)}, {s(sT)}, 6
    s_add_u32 {s(sT)}, {s(sT)}, {STAMP}
    v_lshrrev_b32 v5, 2, v0
    s_mov_b64 exec, 0xffff
    buffer_store_dword v4, v5, {s(R_WS,4)}, {s(sT)} offen""")
a.label("L_exit")
a("s_endpgm")
a.label("L_codeend")

a.label("L_s_safe")
a(f"s_mov_b32 {s(sSafe)}, 1\ns_barrier\ns_barrier\ns_branch L_s_loop0")
a.label("L_a_safe")
a(f"""s_mov_b32 {s(sSafe)}, 1
v_add_u32 v2, {L_Q}, v0
v_lshrrev_b32 v1, 2, v0
s_lshl_b32 {s(sT)}, {s(sW)}, 8
s_add_u32 {s(sT)}, {s(sT)}, {L_M}
v_add_u32 v1, {s(sT)}, v1
s_mov_b32 {s(sI)}, 0
L_safe1:
ds_read_b128 {v(Qr,4)}, v2
v_mov_b32 v8, 0xff800000
s_waitcnt lgkmcnt(0)""")
for kb in range(16):
    a(f"{MF32} {v(S0,16)}, {v(Kr+4*kb,4)}, {v(Qr,4)}, 0")
    for i in range(0, 16, 2):
        a(f"v_max3_f32 v8, v8, {v(S0+i)}, {v(S0+i+1)}")
a(f"""ds_write_b32 v1, v8
v_add_u32 v1, 1024, v1
v_add_u32 v2, 1024, v2
s_add_u32 {s(sI)}, {s(sI)}, 1
s_cmp_lt_u32 {s(sI)}, 8
s_cbranch_scc1 L_safe1
s_waitcnt lgkmcnt(0)
s_barrier
s_barrier
v_add_u32 v2, {L_Q}, v0
v_bfe_u32 v1, v0, 4, 5
v_lshlrev_b32 v1, 2, v1
v_add_u32 v1, {L_M}, v1
s_mov_b32 {s(sI)}, 0
L_safe2:
ds_read_b128 {v(Qr,4)}, v2""")
for i in range(8):
    a(f"ds_read_b32 {v(S1+i)}, v1 offset:{128*i}")
a("s_waitcnt lgkmcnt(0)")
a(f"v_max3_f32 v8, {v(S1)}, {v(S1+1)}, {v(S1+2)}\nv_max3_f32 v8, v8, {v(S1+3)}, {v(S1+4)}\nv_max3_f32 v8, v8, {v(S1+5)}, {v(S1+6)}\nv_max_f32 v8, v8, {v(S1+7)}")
for i in range(16):
    a(f"v_sub_f32 {v(S1+i)}, 0, v8")
for kb in range(16):
    a(f"{MF32} {v(S0,16)}, {v(Kr+4*kb,4)}, {v(Qr,4)}, {v(S1,16)}")
    for i in range(16):
        a(f"v_exp_f32 {v(S0+i)}, {v(S0+i)}")
    for i in range(8):
        a(f"v_cvt_pk_bf16_f32 {v(P0+i)}, {v(S0+2*i)}, {v(S0+2*i+1)}")
    a(f"{MF32} {v(Or,16)}, {v(Vr+8*kb,4)}, {v(P0,4)}, {'0' if kb == 0 else v(Or,16)}")
    a(f"{MF32} {v(Or,16)}, {v(Vr+8*kb+4,4)}, {v(P1,4)}, {v(Or,16)}")
for g in range(3):
    a(f"ds_write_b128 v3, {v(Or+4*g,4)} offset:{1024*g}")
a(f"""v_add_u32 v1, 1024, v1
v_add_u32 v2, 1024, v2
s_waitcnt lgkmcnt(0)
s_barrier
s_barrier
s_add_u32 {s(sI)}, {s(sI)}, 1
s_cmp_lt_u32 {s(sI)}, 8
s_cbranch_scc1 L_safe2
s_branch L_a_post""")

lines, nn = resolve(a.lines, verbose=bool(OPT.get("verbose")))
hdr = open(f"cdna_kernels/{NAME}.s.ref").read().split("; @launch")[0]
out = hdr + f"""; @launch grid=(256,1,1) block=(512,1,1) lds={LDS_SIZE}
.amdgcn_target "amdgcn-amd-amdhsa--gfx950"
.text
.globl {NAME}_kernel
.p2align 8
.type {NAME}_kernel,@function
{NAME}_kernel:
""" + "\n".join(lines) + f"""
.section .rodata,"a"
.p2align 6
.amdhsa_kernel {NAME}_kernel
  .amdhsa_next_free_vgpr 256
  .amdhsa_next_free_sgpr 102
  .amdhsa_accum_offset 256
  .amdhsa_group_segment_fixed_size 0
  .amdhsa_kernarg_size 104
  .amdhsa_user_sgpr_count 2
  .amdhsa_user_sgpr_kernarg_segment_ptr 1
  .amdhsa_system_sgpr_workgroup_id_x 1
.end_amdhsa_kernel
"""
dst = OPT.get("out", f"cdna_kernels/{NAME}.s")
open(dst, "w").write(out)
print(f"wrote {dst}: {len(lines)} lines, {nn} nops inserted")
```

```python
import sys, struct, math
from asmlib import Asm, v, s, resolve

NAME = "adaLN_cond__grouped_kv_mqa__dense_activation_silu__prompt"
OPT = dict(diag=0, stop=99, fast=1, st="nt")
for a in sys.argv[1:]:
    if "=" in a:
        k, x = a.split("=")
        OPT[k] = int(x) if x.lstrip("-").isdigit() else x
DIAG = OPT["diag"]


def f32(x):
    return "0x%08x" % struct.unpack("<I", struct.pack("<f", x))[0]


LOG2E = math.log2(math.e)
EPOCH = 0x0
FQ = 0x1000
FH2 = 0x2000
FHID = 0x3000
MODG = 0x8000
KV = 0x10000
REC = 640
XID = 0x38000
WOP = 0x80000
QB = 0x100000
H2 = 0x300000
X1 = 0x500000
HID = 0x900000
W1P = 0xF00000
W2P = 0x1080000
STAMP = 0x1200000
WS_SIZE = 0x1300000
L_WQ = 0
L_H = 65536
HROW = 1040
L_WKV = L_H + 8 * HROW
L_W1 = 0
L_PKS = 0
L_W2 = 98304
L_ON = 131072
L_MISC = 132096
L_ZERO = L_MISC
L_BAD = L_MISC + 32
L_QCNT = L_MISC + 36
L_STAT = L_MISC + 64
L_Q = 133120
L_PART = 141312
L_PKO = 141312
L_MOD2 = 153600
L_MOD1 = 157696
L_FAST = 161792
L_MODX = 161856
L_M = 162816
L_RED = 0
LDS_SIZE = 163840
R_X, R_WQ, R_WKV, R_PK, R_C, R_WM, R_OUT, R_WS = 32, 36, 40, 44, 48, 52, 56, 60
sW, sSlot, sJ8, sG8, sJ16, sSub, sTag, sEp = 64, 65, 66, 67, 68, 69, 70, 71
sT = 72
sLN = 80
sBad = 96
sCnt = 98
sI = 99
sFast, sRetry = 28, 29
sPkD, sPkS = 30, 31
sPkK = 100
sSafe = 101
SPIN = 1 << 17

a = Asm()
STAMPSETS = {
    5: {},
    6: {},
    1: dict(start=0, ln1=1, t1=2, done=11, modpub=3, kvpub=3, probe=4, attn0=5, attn1=6, h2rdy=7, ffn1=8,
            qgemm=3, qgot=4, wo=6, h2pub=7, hid0=8, ffn2=9),
    2: dict(start=0, karg=1, issued=2, modpub=4, xarr=5, ln1=6, pre=7, t1=8, b4=9, kvpub=10, b5=11),
    3: dict(start=0, b5=1, modx=2, probe=4, attn0=5, tile0=7,
            qgemm=2, b6=3, qflag=4, qgot=6, wold=7, sl0=8, sl2=9, sl3=10, sl6=11),
    4: dict(start=0, attn1=1, h2rdy=2, r0=3, r1=4, r2=5, ffn1=6, done=11, b10=10,
            wo=1, b8=2, h2st=3, h2pub=4, hid0=5, hid1=6, hid2=7, ffn2=8, b9=9),
}


def stamp(name):
    if not DIAG or name not in STAMPSETS[DIAG]:
        return
    k = STAMPSETS[DIAG][name]
    a(f"s_memrealtime {s(4 + 2 * k, 2)}")
    if name in ("attn0", "attn1") and DIAG == 1:
        a(f"s_memtime {s(4 + 2 * (k + 4), 2)}")


slow_out = []


def local_stores(instrs):
    L = a.uid("L_ls")
    out = [f"s_cmp_eq_u32 {s(sFast)}, 0", f"s_cbranch_scc1 {L}s"]
    for t in instrs:
        out.append(t + (" " + OPT["st"] if t.startswith("buffer_store") else ""))
    out.append(L + "b:")
    slow_out.append((L, instrs))
    return "\n".join(out)


def srd(r, size):
    a(f"s_mov_b32 {s(r+2)}, {size}\ns_mov_b32 {s(r+3)}, 0x20000")


def spin_guard():
    a(f"s_add_u32 {s(sCnt)}, {s(sCnt)}, 1\ns_cmp_gt_u32 {s(sCnt)}, {SPIN}\ns_cbranch_scc1 L_end")


def unpack(dlo, dhi, src):
    a(f"v_lshlrev_b32 {v(dlo)}, 16, {v(src)}\nv_and_b32 {v(dhi)}, 0xffff0000, {v(src)}")


def round_bf16(r, n, tmp):
    for i in range(0, n, 2):
        a(f"v_cvt_pk_bf16_f32 {v(tmp + i // 2)}, {v(r+i)}, {v(r+i+1)}")
    for i in range(0, n, 2):
        unpack(r + i, r + i + 1, tmp + i // 2)


def mod_addr(vt):
    a(f"""s_and_b32 {s(sT)}, {s(sSlot)}, 1
    s_lshr_b32 {s(sT+1)}, {s(sSlot)}, 1
    s_lshl_b32 {s(sT+1)}, {s(sT+1)}, 4
    s_mul_i32 {s(sT+2)}, {s(sT)}, {256*6144}
    s_add_u32 {s(sT+1)}, {s(sT+1)}, {s(sT+2)}
    s_lshl_b32 {s(sT)}, {s(sT)}, 9
    v_mul_u32_u24 {v(vt)}, {4*6144//16}, v0
    v_lshrrev_b32 {v(vt+1)}, 1, v0""")


def mod_loads(W, vt, so):
    for i in range(4):
        a(f"buffer_load_dwordx4 {v(W+4*i,4)}, {v(vt)}, {s(R_WM,4)}, {s(so)} offen")
        if i < 3:
            a(f"s_add_u32 {s(so)}, {s(so)}, 6144")


def mod_silu(C, T):
    unpack(T, T + 1, C)
    unpack(T + 2, T + 3, C + 1)
    for i in range(4):
        a(f"v_mul_f32 {v(T+4+i)}, {f32(-LOG2E)}, {v(T+i)}")
    for i in range(4):
        a(f"v_exp_f32 {v(T+4+i)}, {v(T+4+i)}")
    for i in range(4):
        a(f"v_add_f32 {v(T+4+i)}, 1.0, {v(T+4+i)}")
    for i in range(4):
        a(f"v_rcp_f32 {v(T+4+i)}, {v(T+4+i)}")
    for i in range(4):
        a(f"v_mul_f32 {v(T+i)}, {v(T+i)}, {v(T+4+i)}")
    round_bf16(T, 4, T + 8)


def mod_compute(W, S, ACC, U, waits=None, pk=True):
    for i in range(4):
        if waits:
            a(f"s_waitcnt vmcnt({waits - i})")
        for j in range(4):
            unpack(U + 2 * j, U + 2 * j + 1, W + 4 * i + j)
        sel = i & 1
        for j in range(8 if not pk else 0):
            a(f"{'v_mul_f32' if i == 0 else 'v_fmac_f32'} {v(ACC+j)}, {v(U+j)}, {v(S+i)}")
        for j in range(4 if pk else 0):
            if i == 0:
                a(f"v_pk_mul_f32 {v(ACC+2*j,2)}, {v(U+2*j,2)}, {v(S,2)} op_sel:[0,0] op_sel_hi:[1,0]")
            else:
                a(f"v_pk_fma_f32 {v(ACC+2*j,2)}, {v(U+2*j,2)}, {v(S+(i&2),2)}, {v(ACC+2*j,2)} op_sel:[0,{sel},0] op_sel_hi:[1,{sel},1]")
    a(f"v_mov_b32 {v(U)}, 0xff")
    for j in range(4):
        a(f"v_permlane32_swap_b32 {v(ACC+j)}, {v(ACC+4+j)}")
    for j in range(4):
        a(f"v_add_f32 {v(ACC+j)}, {v(ACC+j)}, {v(ACC+4+j)}")
    for sh in (1, 2, 4, 8):
        for j in range(4):
            a(f"v_add_f32_dpp {v(ACC+j)}, {v(ACC+j)}, {v(ACC+j)} row_shr:{sh} row_mask:0xf bank_mask:0xf bound_ctrl:0")
    for j in range(4):
        a(f"v_add_f32_dpp {v(ACC+j)}, {v(ACC+j)}, {v(ACC+j)} row_bcast:15 row_mask:0xa bank_mask:0xf")
    for j in range(4):
        a(f"s_lshr_b32 {s(sT+3)}, {s(sTag)}, {8*j}\nv_bfi_b32 {v(ACC+j)}, {v(U)}, {s(sT+3)}, {v(ACC+j)}")


def mod_pub_addr():
    a(f"""s_and_b32 {s(sT)}, {s(sSlot)}, 1
    s_mul_i32 {s(sT)}, {s(sT)}, 12288
    s_lshr_b32 {s(sT+1)}, {s(sSlot)}, 1
    s_lshl_b32 {s(sT+1)}, {s(sT+1)}, 5
    s_add_u32 {s(sT)}, {s(sT)}, {s(sT+1)}
    s_add_u32 {s(sT)}, {s(sT)}, {MODG}""")


def tag_bytes():
    for j in range(4):
        a(f"s_bfe_u32 {s(sT+4+j)}, {s(sTag)}, {(8 << 16) | (8*j):#x}")


def tag_strip(D, T, first):
    for j in range(4):
        a(f"v_xor_b32 {v(D+j)}, {s(sT+4+j)}, {v(D+j)}")
    if first:
        a(f"v_or3_b32 {v(T)}, {v(D)}, {v(D+1)}, {v(D+2)}\nv_or_b32 {v(T)}, {v(T)}, {v(D+3)}")
    else:
        a(f"v_or3_b32 {v(T)}, {v(T)}, {v(D)}, {v(D+1)}\nv_or3_b32 {v(T)}, {v(T)}, {v(D+2)}, {v(D+3)}")


def poll_flags(vaddr, vdata, soff, mask_lo, mask_hi=0, nap=0):
    L = a.uid("L_pf")
    if mask_lo is not None:
        a(f"s_mov_b32 exec_lo, {mask_lo:#x}\ns_mov_b32 exec_hi, {mask_hi:#x}")
    a(f"s_mov_b32 {s(sCnt)}, 0")
    if nap:
        a(f"s_branch {L}f")
    a.label(L)
    if nap:
        a(f"s_sleep {nap}")
        a.label(L + "f")
    a(f"buffer_load_dword {v(vdata)}, {v(vaddr)}, {s(R_WS,4)}, {soff} offen sc1")
    spin_guard()
    a(f"s_waitcnt vmcnt(0)\nv_cmp_ne_u32 vcc, {s(sTag)}, {v(vdata)}\ns_cbranch_vccnz {L}\ns_mov_b64 exec, -1")


def flag_store(vt, soff, local=True):
    st = f"buffer_store_dword {v(vt)}, v0, {s(R_WS,4)}, {soff} offen"
    return f"v_mov_b32 {v(vt)}, {s(sTag)}\ns_mov_b64 exec, 1\n" + (local_stores([st]) if local else st + " sc1") + "\ns_mov_b64 exec, -1"


def read_fast(vt):
    a(f"v_mov_b32 {v(vt)}, {L_FAST}\nds_read_b32 {v(vt)}, {v(vt)}\ns_waitcnt lgkmcnt(0)\nv_readfirstlane_b32 {s(sFast)}, {v(vt)}")


MF32 = "v_mfma_f32_32x32x16_bf16"
MF16 = "v_mfma_f32_16x16x32_bf16"

stamp("start")
a(f"""s_load_dwordx2 {s(R_WM,2)}, s[0:1], 72
s_load_dwordx2 {s(R_C,2)}, s[0:1], 64
s_load_dwordx2 {s(R_WS,2)}, s[0:1], 96
s_load_dwordx2 {s(R_X,2)}, s[0:1], 0
s_load_dwordx2 {s(R_WQ,2)}, s[0:1], 8
s_load_dwordx2 {s(R_OUT,2)}, s[0:1], 80
v_lshrrev_b32 v1, 6, v0
v_and_b32 v0, 63, v0
v_readfirstlane_b32 {s(sW)}, v1
v_lshlrev_b32 v0, 4, v0
s_cmp_ge_u32 s2, 256
s_cbranch_scc1 L_exit
s_and_b32 {s(sSlot)}, s2, 7
s_lshl_b32 {s(sSlot)}, {s(sSlot)}, 5
s_lshr_b32 {s(sT)}, s2, 3
s_add_u32 {s(sSlot)}, {s(sSlot)}, {s(sT)}
s_and_b32 {s(sSub)}, {s(sW)}, 3
s_cmp_eq_u32 {s(sW)}, 1
s_cselect_b32 {s(sT)}, 16, 24
s_cmp_lt_u32 {s(sW)}, 4
s_cselect_b32 {s(sT)}, {s(sT)}, 32
s_cselect_b32 {s(R_WKV+2)}, 1, 32
s_load_dwordx2 {s(R_WKV,2)}, s[0:1], {s(sT)}
s_lshl_b32 {s(R_WKV+2)}, {s(R_WKV+2)}, 14
s_mov_b32 {s(R_WKV+3)}, 0x20000
s_lshl_b32 {s(sPkK)}, {s(sSlot)}, 2
s_add_u32 {s(sPkK)}, {s(sPkK)}, {s(sSub)}
s_cmp_lt_u32 {s(sPkK)}, 344
s_cselect_b32 {s(sT)}, 56, 48
s_load_dwordx2 {s(R_PK,2)}, s[0:1], {s(sT)}
s_and_b32 {s(sJ8)}, {s(sSlot)}, 7
s_lshr_b32 {s(sG8)}, {s(sSlot)}, 3
s_and_b32 {s(sJ16)}, {s(sSlot)}, 15""")
srd(R_WM, 512 * 6144)
srd(R_C, 1024)
srd(R_WS, WS_SIZE)
srd(R_X, 2048 * 1024)
srd(R_WQ, 512 * 1024)
srd(R_OUT, 2048 * 1024)
srd(R_PK, 1376 * 1024)
mod_addr(146)
a(f"""s_cmp_eq_u32 {s(sW)}, 0
s_cselect_b32 {s(sT+3)}, 1, 2
s_lshl_b32 {s(sT+3)}, {s(sT+3)}, 11
s_add_u32 {s(sT+3)}, {s(sT+3)}, {s(sT+1)}
s_lshl_b32 {s(sT+4)}, {s(sG8)}, 16
s_lshl_b32 {s(sT+5)}, {s(sW)}, 10
s_add_u32 {s(sT+4)}, {s(sT+4)}, {s(sT+5)}
s_lshl_b32 {s(sT+5)}, {s(sJ8)}, 13
s_cmp_eq_u32 {s(sW)}, 0
s_cbranch_scc0 L_nomod0
v_mov_b32 v4, -1
v_mov_b32 v5, -1
v_mov_b32 v6, -1
v_mov_b32 v7, -1
s_mul_i32 {s(sT+2)}, {s(sSlot)}, {REC}
s_add_u32 {s(sT+2)}, {s(sT+2)}, {KV}
s_waitcnt lgkmcnt(0)""")
stamp("karg")
a(f"""s_load_dword {s(sEp)}, {s(R_WS,2)}, {EPOCH}
s_mov_b32 exec_hi, 0xff
buffer_store_dwordx4 v[4:7], v0, {s(R_WS,4)}, {s(sT+2)} offen sc1
s_mov_b32 exec_hi, -1
buffer_load_dwordx2 v[144:145], v147, {s(R_C,4)}, {s(sT)} offen""")
mod_loads(128, 146, sT + 1)
a("s_branch L_xld")
a.label("L_nomod0")
a(f"""s_getpc_b64 {s(sLN,2)}
L_pc0:
s_lshr_b32 {s(sT+2)}, s2, 3
s_mul_i32 {s(sT+2)}, {s(sT+2)}, 7
s_add_u32 {s(sT+2)}, {s(sT+2)}, {s(sW)}
s_lshl_b32 {s(sT+2)}, {s(sT+2)}, 8
s_min_u32 {s(sT+2)}, {s(sT+2)}, L_codeend-L_pc0
v_and_b32 v4, 16, v0
v_lshlrev_b32 v4, 3, v4
v_add_u32 v4, {s(sT+2)}, v4
global_load_dword v31, v4, {s(sLN,2)}
s_waitcnt lgkmcnt(0)""")
stamp("karg")
a(f"""s_load_dword {s(sEp)}, {s(R_WS,2)}, {EPOCH}
s_cmp_eq_u32 {s(sW)}, 3
s_cbranch_scc0 L_notc3
buffer_load_dwordx2 v[144:145], v147, {s(R_C,4)}, {s(sT)} offen
L_notc3:
s_sub_u32 {s(sT+2)}, {s(sW)}, 4
s_cmp_lt_u32 {s(sT+2)}, 2
s_cbranch_scc0 L_xld""")
a(f"""s_and_b32 {s(sT+6)}, {s(sG8)}, 3
s_lshl_b32 {s(sT+6)}, {s(sT+6)}, 1
s_add_u32 {s(sT+2)}, {s(sT+2)}, {s(sT+6)}
s_lshl_b32 {s(sT+2)}, {s(sT+2)}, 16
s_lshl_b32 {s(sT+6)}, {s(sJ8)}, 7
s_add_u32 {s(sT+2)}, {s(sT+2)}, {s(sT+6)}
v_lshlrev_b32 v4, 6, v0
buffer_load_dword v30, v4, {s(R_WQ,4)}, {s(sT+2)} offen""")
a.label("L_xld")
for u in range(8):
    a(f"""s_add_u32 {s(sT+1)}, {s(sT+5)}, {s(sT+4)}
    buffer_load_dwordx4 {v(32+4*u,4)}, v0, {s(R_X,4)}, {s(sT+1)} offen""")
    if u < 7:
        a(f"s_add_u32 {s(sT+5)}, {s(sT+5)}, 8192\ns_and_b32 {s(sT+5)}, {s(sT+5)}, 0xffff")
a(f"""s_cmp_lt_u32 {s(sW)}, 4
s_cbranch_scc0 L_st_s
s_sub_u32 {s(sT)}, {s(sW)}, 1
s_cmp_lt_u32 {s(sT)}, 2
s_cbranch_scc0 L_st_03""")
a(f"""s_lshl_b32 {s(sT)}, {s(sT)}, 14
s_add_u32 m0, {s(sT)}, {L_WKV}
s_mov_b32 {s(sT+1)}, 0""")
for n in range(4):
    for q in range(4):
        a(f"buffer_load_dwordx4 v0, {s(R_WKV,4)}, {s(sT+1)} offen offset:{1024*q} lds")
    if n < 3:
        a(f"s_add_u32 m0, m0, 4096\ns_add_u32 {s(sT+1)}, {s(sT+1)}, 4096")
stamp("issued")
a("s_waitcnt vmcnt(16)\ns_branch L_xwait")
a(f"""L_st_s:
s_cmp_eq_u32 {s(sW)}, 7
s_cbranch_scc0 L_st_s0
v_lshrrev_b32 v4, 6, v0
v_lshlrev_b32 v4, 10, v4
v_and_b32 v5, 0x30, v0
v_add_u32 v4, v4, v5
s_lshr_b32 {s(sT)}, {s(sSlot)}, 4
s_lshl_b32 {s(sT)}, {s(sT)}, 15
s_lshl_b32 {s(sT+1)}, {s(sJ16)}, 6
s_mov_b32 m0, {L_PKO}
s_add_u32 {s(sT)}, {s(sT)}, {s(sT+1)}
buffer_load_dwordx4 v4, {s(R_WKV,4)}, {s(sT)} offen lds
s_mov_b32 m0, {L_PKO + 1024}
s_add_u32 {s(sT)}, {s(sT)}, 16384
buffer_load_dwordx4 v4, {s(R_WKV,4)}, {s(sT)} offen lds
s_waitcnt vmcnt(2)
s_branch L_xwait
L_st_s0:""")
stamp("issued")
a("s_waitcnt vmcnt(0)\ns_branch L_xwait")
a.label("L_st_03")
mod_loads(180, 146, sT + 3)
stamp("issued")
a(f"""s_waitcnt lgkmcnt(0)
s_mul_i32 {s(sTag)}, {s(sEp)}, 0x9e3779b1
s_add_u32 {s(sTag)}, {s(sTag)}, 0x7f4a7c15
s_cmp_eq_u32 {s(sW)}, 0
s_cbranch_scc0 L_st_3
s_setprio 3""")
mod_pub_addr()
a("v_lshrrev_b32 v176, 9, v0\nv_lshlrev_b32 v176, 4, v176\ns_waitcnt vmcnt(16)")
mod_silu(144, 148)
mod_compute(128, 148, 160, 168, waits=15)
a(f"""s_mov_b32 exec_lo, 0x80000000
s_mov_b32 exec_hi, 0x80000000
buffer_store_dwordx4 v[160:163], v176, {s(R_WS,4)}, {s(sT)} offen sc1
s_mov_b64 exec, -1""")
stamp("modpub")
a(f"""s_setprio 0
s_waitcnt vmcnt(5)
s_branch L_xwait
L_st_3:
s_getreg_b32 {s(sT)}, hwreg(HW_REG_XCC_ID)
s_and_b32 {s(sT)}, {s(sT)}, 15
s_xor_b32 {s(sT)}, {s(sT)}, {s(sTag)}
v_mov_b32 v4, {s(sT)}
s_lshl_b32 {s(sT)}, {s(sSlot)}, 5
s_add_u32 {s(sT)}, {s(sT)}, {XID}
s_mov_b64 exec, 1
buffer_store_dword v4, v0, {s(R_WS,4)}, {s(sT)} offen sc1
s_mov_b64 exec, -1
s_waitcnt vmcnt(13)""")
mod_silu(144, 148)
a("s_waitcnt vmcnt(5)")
a.label("L_xwait")
stamp("xarr")
a(f"""v_lshrrev_b32 v2, 7, v0
v_lshlrev_b32 v2, 10, v2
v_bfe_u32 v3, v0, 8, 1
v_lshlrev_b32 v3, 6, v3
v_xor_b32 v3, v3, v0
v_and_b32 v3, 0x70, v3
v_add_u32 v2, v2, v3
s_lshl_b32 {s(sT)}, {s(sW)}, 16
s_lshl_b32 {s(sT+1)}, {s(sJ8)}, 7
s_lshl_b32 m0, {s(sW)}, 13
s_add_u32 {s(sT)}, {s(sT)}, {s(sT+1)}""")
assert L_WQ == 0
for u in range(8):
    a(f"buffer_load_dwordx4 v2, {s(R_WQ,4)}, {s(sT)} offen lds")
    if u < 7:
        a(f"s_add_u32 m0, m0, 1024\ns_add_u32 {s(sT)}, {s(sT)}, 8192")
    for j in range(4):
        unpack(64 + 8 * u + 2 * j, 64 + 8 * u + 2 * j + 1, 32 + 4 * u + j)
    X = 64 + 8 * u
    t0 = 20 + 4 * (u & 1)
    a(f"""v_pk_add_f32 {v(t0,2)}, {v(X,2)}, {v(X+2,2)}
    v_pk_mul_f32 {v(t0+2,2)}, {v(X,2)}, {v(X,2)}
    v_pk_add_f32 {v(t0,2)}, {v(t0,2)}, {v(X+4,2)}
    v_pk_fma_f32 {v(t0+2,2)}, {v(X+2,2)}, {v(X+2,2)}, {v(t0+2,2)}
    v_pk_add_f32 {v(t0,2)}, {v(t0,2)}, {v(X+6,2)}
    v_pk_fma_f32 {v(t0+2,2)}, {v(X+4,2)}, {v(X+4,2)}, {v(t0+2,2)}
    v_add_f32 {v(4+u)}, {v(t0)}, {v(t0+1)}
    v_pk_fma_f32 {v(t0+2,2)}, {v(X+6,2)}, {v(X+6,2)}, {v(t0+2,2)}
    v_add_f32 {v(12+u)}, {v(t0+2)}, {v(t0+3)}""")
for b in (4, 12):
    for u in range(4):
        a(f"v_permlane32_swap_b32 {v(b+u)}, {v(b+4+u)}")
for b in (4, 12):
    a(f"v_pk_add_f32 {v(b,2)}, {v(b,2)}, {v(b+4,2)}\nv_pk_add_f32 {v(b+2,2)}, {v(b+2,2)}, {v(b+6,2)}")
for b in (4, 12):
    for u in range(2):
        a(f"v_permlane16_swap_b32 {v(b+u)}, {v(b+2+u)}")
for b in (4, 12):
    a(f"v_pk_add_f32 {v(b,2)}, {v(b,2)}, {v(b+2,2)}")
a(f"v_mov_b32 v20, {f32(1.0/512)}\nv_mov_b32 v21, {f32(1e-5)}")
for sh in (8, 4, 2, 1):
    for r in (4, 5, 12, 13):
        a(f"v_add_f32_dpp {v(r)}, {v(r)}, {v(r)} row_ror:{sh} row_mask:0xf bank_mask:0xf")
a(f"""v_mul_f32 v4, v20, v4
v_mul_f32 v5, v20, v5
v_fma_f32 v12, v12, v20, v21
v_fma_f32 v13, v13, v20, v21
v_fma_f32 v12, -v4, v4, v12
v_fma_f32 v13, -v5, v5, v13
v_max_f32 v12, v21, v12
v_max_f32 v13, v21, v13
v_rsq_f32 v12, v12
v_rsq_f32 v13, v13
v_mul_f32_e64 v4, v4, -v12
v_mul_f32_e64 v5, v5, -v13""")
for u in range(8):
    e, rho = u & 1, ((u >> 1) & 1) + 2 * (u >> 2)
    a(f"v_readlane_b32 {s(sLN+2*u)}, {v(12+e)}, {16*rho}\nv_readlane_b32 {s(sLN+2*u+1)}, {v(4+e)}, {16*rho}")
for u in range(8):
    for j in range(4):
        X = 64 + 8 * u + 2 * j
        a(f"v_pk_fma_f32 {v(X,2)}, {v(X,2)}, {s(sLN+2*u,2)}, {s(sLN+2*u,2)} op_sel:[0,0,1] op_sel_hi:[1,0,1]")
stamp("ln1")
a(f"""s_waitcnt lgkmcnt(0)
s_mul_i32 {s(sTag)}, {s(sEp)}, 0x9e3779b1
s_add_u32 {s(sTag)}, {s(sTag)}, 0x7f4a7c15
v_lshlrev_b32 v1, 1, v0
s_mul_i32 {s(sT)}, {s(sW)}, {HROW}
s_add_u32 {s(sT)}, {s(sT)}, {L_H}
v_add_u32 v3, {s(sT)}, v0
v_add_u32 v1, {L_MOD1}, v1
v_mov_b32 v29, 0
v_mov_b32 v130, 0
s_mov_b32 {s(sSafe)}, 0
s_mov_b32 {s(sRetry)}, 0
s_cmp_lt_u32 {s(sW)}, 4
s_cbranch_scc0 L_s_pre""")
a(f"""s_sub_u32 {s(sT)}, {s(sW)}, 1
s_cmp_lt_u32 {s(sT)}, 2
s_cbranch_scc0 L_a_nokv
s_lshl_b32 {s(sT)}, {s(sT)}, 14
s_add_u32 {s(sT)}, {s(sT)}, {L_WKV}
v_and_b32 v4, 0x300, v0
v_and_b32 v5, 0xf0, v0
v_lshrrev_b32 v5, 1, v5
v_add3_u32 v4, v4, v5, {s(sT)}
s_waitcnt vmcnt(8)""")
for ks in range(16):
    for j in range(2):
        a(f"ds_read_b64_tr_b16 {v(128+4*ks+2*j,2)}, v4 offset:{ks*1024+j*128}")
a(f"""v_lshrrev_b32 v5, 8, v0
v_lshlrev_b32 v5, 4, v5
s_cmp_eq_u32 {s(sW)}, 1
s_cbranch_scc0 L_a_vaddr
v_bfe_u32 v4, v0, 4, 3
v_lshl_add_u32 v29, v4, 5, v5
s_branch L_a_kvaddr
L_a_vaddr:
v_bfe_u32 v4, v0, 4, 2
v_bfe_u32 v6, v0, 7, 1
v_lshl_add_u32 v4, v6, 2, v4
v_add_u32 v29, 256, v0
L_a_kvaddr:
v_mul_u32_u24 v28, {HROW}, v4
v_add_u32 v28, v28, v5
v_add_u32 v28, {L_H}, v28""")
a.label("L_a_nokv")
tag_bytes()
a(f"""s_lshl_b32 {s(sT+2)}, {s(sW)}, 10
s_add_u32 {s(sT)}, {s(sT+2)}, {MODG}
s_add_u32 {s(sT+1)}, {s(sT)}, 12288
s_add_u32 {s(sT+2)}, {s(sT+2)}, {L_MOD1}
v_add_u32 v13, {s(sT+2)}, v0
s_mov_b32 {s(sCnt)}, 0
s_setprio 2""")
stamp("pre")
a(f"""L_poll1:
buffer_load_dwordx4 v[4:7], v0, {s(R_WS,4)}, {s(sT)} offen sc1
buffer_load_dwordx4 v[8:11], v0, {s(R_WS,4)}, {s(sT+1)} offen sc1""")
spin_guard()
a("s_waitcnt vmcnt(1)")
tag_strip(4, 12, True)
a("s_waitcnt vmcnt(0)")
tag_strip(8, 12, False)
a(f"""v_and_b32 v12, 0xff, v12
v_cmp_ne_u32 vcc, 0, v12
s_and_b64 exec, exec, vcc
s_cbranch_execnz L_poll1
s_mov_b64 exec, -1
v_pk_add_f32 v[4:5], v[4:5], v[8:9]
v_pk_add_f32 v[6:7], v[6:7], v[10:11]""")
round_bf16(4, 4, 8)
a(f"s_cmp_lt_u32 {s(sW)}, 2\ns_cbranch_scc1 L_noadd1\nv_pk_add_f32 v[4:5], v[4:5], 1.0 op_sel_hi:[1,0]\nv_pk_add_f32 v[6:7], v[6:7], 1.0 op_sel_hi:[1,0]")
round_bf16(4, 4, 8)
a.label("L_noadd1")
a(f"ds_write_b128 v13, v[4:7]\ns_setprio 0\ns_branch L_t1")
a.label("L_s_pre")
a(f"""s_cmp_eq_u32 {s(sW)}, 4
s_cbranch_scc0 L_s_nz
v_mov_b32 v4, 0
v_mov_b32 v5, 0
v_mov_b32 v6, 0
v_mov_b32 v7, 0
v_add_u32 v8, {L_MISC}, v0
ds_write_b128 v8, v[4:7]
L_s_nz:
s_cmp_eq_u32 {s(sW)}, 7
s_cbranch_scc0 L_s_n7
v_lshrrev_b32 v4, 8, v0
v_bfe_u32 v5, v0, 6, 2
v_lshl_add_u32 v4, v4, 3, v5
v_lshlrev_b32 v4, 6, v4
v_bfe_u32 v5, v0, 4, 2
v_lshl_add_u32 v4, v5, 3, v4
v_add_u32 v4, {L_PKO}, v4
s_waitcnt vmcnt(8)
ds_read_b64_tr_b16 v[8:9], v4
ds_read_b64_tr_b16 v[10:11], v4 offset:256
ds_read_b64_tr_b16 v[12:13], v4 offset:32
ds_read_b64_tr_b16 v[14:15], v4 offset:288
s_lshr_b32 {s(sT)}, {s(sSlot)}, 5
s_lshl_b32 {s(sT)}, {s(sT)}, 16
s_bfe_u32 {s(sT+1)}, {s(sSlot)}, 0x10004
s_lshl_b32 {s(sT+1)}, {s(sT+1)}, 13
s_add_u32 {s(sT)}, {s(sT)}, {s(sT+1)}
s_bfe_u32 {s(sT+1)}, {s(sSlot)}, 0x20002
s_lshl_b32 {s(sT+1)}, {s(sT+1)}, 14
s_add_u32 {s(sT)}, {s(sT)}, {s(sT+1)}
s_and_b32 {s(sT+1)}, {s(sSlot)}, 3
s_lshl_b32 {s(sT+1)}, {s(sT+1)}, 11
s_add_u32 {s(sT)}, {s(sT)}, {s(sT+1)}
s_add_u32 {s(sT)}, {s(sT)}, {WOP}
s_waitcnt lgkmcnt(0)
buffer_store_dwordx4 v[8:11], v0, {s(R_WS,4)}, {s(sT)} offen sc1
buffer_store_dwordx4 v[12:15], v0, {s(R_WS,4)}, {s(sT)} offen offset:1024 sc1
L_s_n7:
s_cmp_eq_u32 {s(sW)}, 6
s_cbranch_scc0 L_s_n6
s_lshr_b32 {s(sT)}, {s(sSlot)}, 4
s_lshl_b32 {s(sT)}, {s(sT)}, 9
s_add_u32 {s(sT)}, {s(sT)}, {XID}
s_getreg_b32 {s(sT+1)}, hwreg(HW_REG_XCC_ID)
s_and_b32 {s(sT+1)}, {s(sT+1)}, 15
v_lshlrev_b32 v4, 1, v0
s_mov_b64 exec, 0xffff
s_mov_b32 {s(sCnt)}, 0
L_pollx:
buffer_load_dword v5, v4, {s(R_WS,4)}, {s(sT)} offen sc1""")
spin_guard()
a(f"""s_waitcnt vmcnt(0)
v_xor_b32 v5, {s(sTag)}, v5
v_cmp_lt_u32 vcc, 15, v5
s_cbranch_vccnz L_pollx
v_cmp_ne_u32 vcc, {s(sT+1)}, v5
s_cmp_eq_u64 vcc, 0
s_cselect_b32 {s(sT)}, {OPT['fast']}, 0
v_mov_b32 v5, {s(sT)}
v_mov_b32 v4, {L_FAST}
ds_write_b32 v4, v5
s_mov_b64 exec, -1
L_s_n6:""")
a(f"""v_lshrrev_b32 v5, 9, v0
v_lshlrev_b32 v4, 10, v5
v_bfe_u32 v6, v0, 6, 2
v_lshl_add_u32 v4, v6, 7, v4
v_bfe_u32 v6, v0, 8, 1
v_lshl_add_u32 v4, v6, 5, v4
v_bfe_u32 v6, v0, 4, 2
v_lshl_add_u32 v4, v6, 3, v4
v_bfe_u32 v6, v0, 7, 1
s_lshr_b32 {s(sT)}, {s(sSub)}, 1
v_xor_b32 v6, {s(sT)}, v6
v_lshl_add_u32 v128, v6, 6, v4
v_bfe_u32 v4, v0, 4, 5
v_mul_u32_u24 v129, {HROW}, v4
v_lshl_add_u32 v129, v5, 4, v129
s_and_b32 {s(sT)}, {s(sSub)}, 1
s_mul_i32 {s(sT+1)}, {s(sT)}, {32*HROW}
s_add_u32 {s(sT+1)}, {s(sT+1)}, {L_H}
v_add_u32 v129, {s(sT+1)}, v129
v_lshrrev_b32 v6, 3, v4
s_lshl_b32 {s(sT)}, {s(sT)}, 2
v_add_u32 v6, {s(sT)}, v6
v_add_u32 v7, {s(sJ8)}, v6
v_and_b32 v7, 7, v7
v_lshlrev_b32 v7, 13, v7
v_sub_u32 v6, 8, v6
v_and_b32 v6, 7, v6
v_lshl_add_u32 v7, v6, 10, v7
v_and_b32 v6, 0x70, v0
v_lshl_add_u32 v6, v5, 9, v6
s_lshr_b32 {s(sT)}, {s(sSub)}, 1
s_lshl_b32 {s(sT)}, {s(sT)}, 8
v_add_u32 v6, {s(sT)}, v6
v_add_u32 v130, v7, v6
v_add_u32 v131, {L_Q}, v6""")
a(f"""v_bfe_u32 v4, v0, 4, 3
s_lshl_b32 {s(sT)}, {s(sSub)}, 3
v_add_u32 v5, {s(sT)}, v4
v_lshlrev_b32 v5, 4, v5
v_add_u32 v133, {L_PART + 2048}, v5
v_lshrrev_b32 v6, 9, v0
v_lshl_add_u32 v5, v6, 10, v5
v_bfe_u32 v7, v0, 8, 1
v_lshl_add_u32 v5, v7, 9, v5
v_bfe_u32 v7, v0, 7, 1
v_lshl_add_u32 v5, v7, 3, v5
v_add_u32 v132, {L_PART}, v5
v_lshlrev_b32 v5, 7, v6
v_lshl_add_u32 v5, v4, 4, v5
v_bfe_u32 v16, v0, 7, 2
v_lshl_add_u32 v5, v16, 2, v5
s_lshl_b32 {s(sT)}, {s(sSub)}, 8
s_add_u32 {s(sT)}, {s(sT)}, {L_ON}
v_add_u32 v134, {s(sT)}, v5
v_lshrrev_b32 v5, 8, v0
v_lshlrev_b32 v6, 7, v5
v_lshl_add_u32 v6, v4, 4, v6
v_add_u32 v6, {L_ON}, v6
v_cmp_eq_u32 vcc, 0, v7
v_mov_b32 v16, {L_ZERO}
v_lshlrev_b32 v17, 8, v7
v_cndmask_b32 v135, v16, v6, vcc
v_cndmask_b32 v136, v6, v16, vcc
v_lshl_add_u32 v17, v5, 4, v17
s_lshl_b32 {s(sT)}, {s(sSub)}, 9
v_add_u32 v137, {s(sT)}, v17
v_lshrrev_b32 v6, 1, v137
v_lshl_add_u32 v6, v4, 10, v6
v_add_u32 v137, {L_MOD2}, v137
s_lshl_b32 {s(sT)}, {s(sSlot)}, 13""")
for j in range(4):
    a(f"buffer_load_dwordx2 {v(140+2*j,2)}, v6, {s(R_X,4)}, {s(sT)} offen offset:{32*j}")
stamp("pre")
a.label("L_t1")
a("s_waitcnt lgkmcnt(0)\ns_barrier")
stamp("t1")
a(f"""ds_read_b128 v[12:15], v1 offset:2048
ds_read_b128 v[4:7], v1
ds_read_b128 v[16:19], v1 offset:2064
ds_read_b128 v[8:11], v1 offset:16""")


def h_ops(u, T):
    X = 64 + 8 * u
    return [f"v_pk_fma_f32 {v(X+2*j,2)}, {v(X+2*j,2)}, {v(12+2*j,2)}, {v(4+2*j,2)}" for j in range(4)] + \
           [f"v_cvt_pk_bf16_f32 {v(T+j)}, {v(X+2*j)}, {v(X+2*j+1)}" for j in range(4)]


def h_write(u, T):
    return f"ds_write_b128 v3, {v(T,4)} offset:{u*8*HROW}"


o = h_ops(0, 20)
a("\n".join(["s_waitcnt lgkmcnt(2)", o[0], o[1], o[4], o[5], "s_waitcnt lgkmcnt(0)", o[2], o[3], o[6], o[7], h_write(0, 20)]))
a(f"s_sub_u32 {s(sT)}, {s(sW)}, 1\ns_cmp_lt_u32 {s(sT)}, 2\ns_waitcnt lgkmcnt(0)\ns_barrier")
stamp("b4")
a(f"s_cbranch_scc0 L_nokv\ns_setprio 3")
for ks in range(16):
    a(f"ds_read_b128 {v(192+4*ks,4)}, v28 offset:{ks*64}")
fill_all = []
for u in range(1, 8):
    fill_all += h_ops(u, 32 + 4 * u)
NF = 16
a("\n".join(fill_all[:NF]))
a(f"s_cmp_eq_u32 {s(sW)}, 1\ns_cbranch_scc0 L_vproj")
for variant in range(2):
    for ks in range(16):
        A, B = (128 + 4 * ks, 192 + 4 * ks) if variant == 0 else (192 + 4 * ks, 128 + 4 * ks)
        if ks % 2 == 0:
            a(f"s_waitcnt lgkmcnt({14-ks})")
        a(f"{MF16} v[20:23], {v(A,4)}, {v(B,4)}, {'0' if ks == 0 else 'v[20:23]'}")
    if variant == 0:
        a(f"s_mov_b32 {s(sT+1)}, 0x00ff00ff\ns_mov_b32 {s(sT+3)}, 8\ns_branch L_kvout\nL_vproj:")
    else:
        a(f"s_mov_b32 {s(sT+1)}, 0x0001ffff\ns_mov_b32 {s(sT+3)}, 16")
a.label("L_kvout")
a(f"""s_mul_i32 {s(sT)}, {s(sSlot)}, {REC}
s_add_u32 {s(sT)}, {s(sT)}, {KV}
s_mov_b32 {s(sT+2)}, 0x3f803f80
s_mov_b32 m0, {s(sT+3)}
v_cvt_pk_bf16_f32 v26, v20, v21
v_cvt_pk_bf16_f32 v27, v22, v23
v_cvt_pk_bf16_f32 v30, v20, v21
v_cvt_pk_bf16_f32 v31, v22, v23
v_cvt_pk_bf16_f32 v24, v20, v21
v_cvt_pk_bf16_f32 v25, v22, v23
v_permlane32_swap_b32 v30, v26
v_permlane32_swap_b32 v31, v27
v_min_u32 v24, -2, v24
v_writelane_b32 v24, {s(sT+2)}, m0
v_writelane_b32 v25, {s(sT+2)}, m0
v_writelane_b32 v26, {s(sT+2)}, m0
v_writelane_b32 v27, {s(sT+2)}, m0
s_mov_b32 exec_lo, {s(sT+1)}
s_mov_b32 exec_hi, 0
buffer_store_dwordx4 v[24:27], v29, {s(R_WS,4)}, {s(sT)} offen sc1
s_mov_b64 exec, -1""")
stamp("kvpub")
a("s_branch L_hrest")
a.label("L_nokv")
a("\n".join(fill_all[:NF]))
a.label("L_hrest")
for u in range(1, 8):
    if 8 * (u - 1) >= NF:
        a("\n".join(h_ops(u, 32 + 4 * u)))
    if u >= 3:
        a(h_write(u - 2, 32 + 4 * (u - 2)))
a(h_write(6, 56) + "\n" + h_write(7, 60))
a(f"s_setprio 0\ns_cmp_lt_u32 {s(sW)}, 4\ns_cbranch_scc0 L_s_q")
a("s_waitcnt lgkmcnt(0)\ns_barrier")
stamp("b5")

a(f"s_sub_u32 {s(sT)}, {s(sW)}, 1\ns_cmp_lt_u32 {s(sT)}, 2\ns_cbranch_scc1 L_a_nomodx")
mod_compute(180, 148, 96, 104, pk=False)
a(f"""s_lshr_b32 {s(sT)}, {s(sW)}, 1
s_lshl_b32 {s(sT)}, {s(sT)}, 5
s_add_u32 {s(sT)}, {s(sT)}, {L_MODX}
v_lshrrev_b32 v4, 9, v0
v_lshlrev_b32 v4, 4, v4
v_add_u32 v4, {s(sT)}, v4
s_mov_b32 exec_lo, 0x80000000
s_mov_b32 exec_hi, 0x80000000
ds_write_b128 v4, v[96:99]
s_mov_b64 exec, -1""")
a.label("L_a_nomodx")
read_fast(4)
stamp("modx")
Qr, P0, P1, Or, S0, S1, Kr, Vr = 4, 8, 12, 16, 32, 48, 64, 128
vK, vV = 1, 3
a(f"""v_bfe_u32 v4, v0, 8, 1
v_bfe_u32 v5, v0, 6, 1
v_lshl_add_u32 v4, v4, 1, v5
v_mul_u32_u24 {v(vK)}, {REC}, v4
v_bfe_u32 v4, v0, 7, 1
v_bfe_u32 v5, v0, 4, 2
v_lshl_add_u32 v4, v4, 2, v5
v_lshl_add_u32 {v(vK)}, v4, 5, {v(vK)}
v_lshrrev_b32 v4, 9, v0
v_lshl_add_u32 {v(vK)}, v4, 4, {v(vK)}
v_mul_u32_u24 v4, {REC}, v4
v_and_b32 v5, 0x1f0, v0
v_cmp_lt_u32 vcc, 0x100, v5
v_add3_u32 v4, v4, v5, 64
v_add_u32 v4, 192, v4
v_mov_b32 v5, 0x7f000000
v_cndmask_b32 {v(vV)}, v4, v5, vcc
v_add_u32 v2, {L_Q}, v0
s_mul_i32 {s(sT)}, {s(sW)}, {64*REC}
s_add_u32 {s(sT)}, {s(sT)}, {KV}""")
for g in range(8):
    a(f"s_add_u32 {s(sT+1)}, {s(sG8)}, {g}\ns_and_b32 {s(sT+1)}, {s(sT+1)}, 7\ns_mul_i32 {s(sT+1)}, {s(sT+1)}, {8*REC}\ns_add_u32 {s(sLN+g)}, {s(sT+1)}, {s(sT)}")


def group_loads(g):
    out = []
    for kb in (2 * g, 2 * g + 1):
        out.append(f"buffer_load_dwordx4 {v(Kr+4*kb,4)}, {v(vK)}, {s(R_WS,4)}, {s(sLN+g)} offen offset:{4*REC*(kb&1)} sc1")
        for m in range(2):
            out.append(f"buffer_load_dwordx4 {v(Vr+8*kb+4*m,4)}, {v(vV)}, {s(R_WS,4)}, {s(sLN+g)} offen offset:{4*REC*(kb&1)+2*REC*m} sc1")
    return out


def group_max(g, first=True):
    r = [Kr + 8 * g, Kr + 8 * g + 4] + [Vr + 16 * g + 4 * i for i in range(4)]
    out = [f"v_max_u32 v8, {v(r[0])}, {v(r[1])}" if first else f"v_max3_u32 v8, v8, {v(r[0])}, {v(r[1])}"]
    return out + [f"v_max3_u32 v8, v8, {v(r[2])}, {v(r[3])}", f"v_max3_u32 v8, v8, {v(r[4])}, {v(r[5])}"]


a(f"s_mov_b32 {s(sCnt)}, 0\nL_probe:")
a("\n".join(group_loads(0) + group_loads(1)))
spin_guard()
a("s_waitcnt vmcnt(0)")
a("\n".join(group_max(0) + group_max(1, False)))
a("v_cmp_eq_u32 vcc, -1, v8\ns_cbranch_vccnz L_probe")
stamp("probe")
a("\n".join(group_loads(2) + group_loads(3)))
a("s_barrier")
stamp("attn0")
jit = [(g, t) for g in range(4, 8) for t in group_loads(g)]
issued = [g for g in (2, 3) for _ in range(6)]


def bar(acc):
    if DIAG != 5:
        return ["s_barrier"]
    return ["s_memtime s[12:13]", "s_barrier", "s_memtime s[14:15]", "s_waitcnt lgkmcnt(0)", "s_sub_u32 s14, s14, s12", f"s_max_u32 s{acc+12}, s{acc+12}, s14", f"s_add_u32 s{acc}, s{acc}, s14"]


def attn_step(j, first_tile):
    C = S0 if j % 2 == 0 else S1
    N = S1 if j % 2 == 0 else S0
    e = lambda i: f"v_exp_f32 {v(C+i)}, {v(C+i)}"
    c = lambda i: f"v_cvt_pk_bf16_f32 {v(P0+i)}, {v(C+2*i)}, {v(C+2*i+1)}"
    qk = f"{MF32} {v(N,16)}, {v(Kr+4*((j+1)%16),4)}, {v(Qr,4)}, 0"
    pvp = f"{MF32} {v(Or,16)}, {v(Vr+8*((j-1)%16)+4,4)}, {v(P1,4)}, {v(Or,16)}"
    pv0 = f"{MF32} {v(Or,16)}, {v(Vr+8*j,4)}, {v(P0,4)}, {'0' if j == 0 else v(Or,16)}"
    if j == 15:
        qk = "s_waitcnt lgkmcnt(0)\n" + qk
    if j == 14:
        if first_tile:
            qk += f"\ns_waitcnt lgkmcnt(0)\nv_readfirstlane_b32 {s(sT)}, v1\nv_add_u32 v2, 1024, v2\ns_cmp_lg_u32 {s(sT)}, 4\ns_cbranch_scc1 L_qwait\nL_qok:"
        else:
            qk += "\nv_add_u32 v2, 1024, v2"
        qk += f"\nds_read_b128 {v(Qr,4)}, v2"
    if first_tile and j % 2 == 1 and 3 <= j < 15:
        g = (j + 1) // 2
        assert issued.count(g) == 6
        young = sum(1 for x in issued if x > g)
        qk = "\n".join([f"s_waitcnt vmcnt({young})", f"L_gchk{g}:"] + group_max(g) + ["v_cmp_eq_u32 vcc, -1, v8", f"s_cbranch_vccnz L_gretry{g}", qk])
        if j == 13:
            qk += f"\nv_mov_b32 v1, {L_QCNT}\nds_read_b32 v1, v1"
    if j == 0:
        W = [f"ds_write_b128 v3, {v(Or+4*g,4)} offset:{1024*g}" for g in range(3)]
        seq = [qk, e(0), e(1), e(2)] + ([] if first_tile else [pvp]) + [e(3), e(4), c(0), c(1), e(5), e(6), e(7), c(2), e(8), c(3), e(9), e(10)]
        seq += ([] if first_tile else W) + [pv0, e(11), c(4), e(12), e(13), c(5), e(14), e(15), c(6), c(7)]
        if not first_tile:
            seq += ["s_waitcnt lgkmcnt(0)"] + bar(4)
    else:
        seq = [qk, e(0), e(1), e(2), e(3), e(4), c(0), c(1), e(5), pvp, e(6), e(7), c(2), e(8), c(3), e(9), e(10), e(11), pv0,
               c(4), e(12), e(13), c(5), e(14), e(15), c(6), c(7)]
        if j == MSTEP and not first_tile:
            seq += bar(6)
    if first_tile:
        for pos in ([22, 13, 4] if j % 2 == 0 else [20, 8]):
            if jit:
                pass
        take = [jit.pop(0) for _ in range(min(len(jit), 3 if j % 2 == 0 else 2))]
        for n, (g, t) in reversed(list(enumerate(take))):
            seq.insert(4 + 9 * n, t)
        issued.extend(g for g, _ in take)
    a("\n".join(seq))


MSTEP = OPT.get("mstep", 3)
a(f"ds_read_b128 {v(Qr,4)}, v2\ns_waitcnt lgkmcnt(0)\n{MF32} {v(S0,16)}, {v(Kr,4)}, {v(Qr,4)}, 0")
for j in range(16):
    attn_step(j, True)
assert not jit
stamp("tile0")
a(f"""s_mul_i32 {s(sT)}, {s(sW)}, 3072
s_add_u32 {s(sT)}, {s(sT)}, {L_PART}
v_add_u32 v3, {s(sT)}, v0
s_mov_b32 {s(sI)}, 1""")
if DIAG in (5, 6):
    a("s_mov_b32 s4, 0\ns_mov_b32 s6, 0\ns_mov_b32 s16, 0\ns_mov_b32 s18, 0\ns_memtime s[8:9]")
a(".p2align 6\nL_attn:")
for j in range(16):
    attn_step(j, False)
a(f"s_add_u32 {s(sI)}, {s(sI)}, 1\ns_cmp_lt_u32 {s(sI)}, 8\ns_cbranch_scc1 L_attn")
if DIAG in (5, 6):
    a("s_memtime s[10:11]")
a(f"{MF32} {v(Or,16)}, {v(Vr+8*15+4,4)}, {v(P1,4)}, {v(Or,16)}")
for g in range(3):
    a(f"ds_write_b128 v3, {v(Or+4*g,4)} offset:{1024*g}")
a("s_waitcnt lgkmcnt(0)\ns_barrier")
stamp("attn1")
if OPT["stop"] == 2:
    a("s_branch L_end")
a("s_barrier")
a.label("L_a_post")
a(f"v_mov_b32 v8, {L_BAD}\nds_read_b32 v8, v8\ns_waitcnt lgkmcnt(0)\nv_readfirstlane_b32 {s(sT)}, v8\ns_cmp_lg_u32 {s(sT)}, {s(sSafe)}\ns_cbranch_scc1 L_a_safe")
a(f"""s_lshr_b32 {s(sT)}, {s(sSlot)}, 4
s_lshl_b32 {s(sT)}, {s(sT)}, 2
s_add_u32 {s(sT)}, {s(sT)}, {s(sW)}
s_lshl_b32 {s(sT+1)}, {s(sT)}, 6
s_add_u32 {s(sT+1)}, {s(sT+1)}, {FH2}
s_lshl_b32 {s(sT+2)}, {s(sT)}, 15
s_add_u32 {s(sT+2)}, {s(sT+2)}, {H2}
s_mul_i32 {s(sT+3)}, {s(sT)}, {86*1024}
s_lshl_b32 {s(sT+4)}, {s(sJ16)}, 11
s_add_u32 {s(sT+3)}, {s(sT+3)}, {s(sT+4)}
s_add_u32 {s(sT+3)}, {s(sT+3)}, {HID}
s_lshl_b32 {s(sT+4)}, {s(sT)}, 8
s_lshl_b32 {s(sT+5)}, {s(sJ16)}, 2
s_add_u32 {s(sT+4)}, {s(sT+4)}, {s(sT+5)}
s_add_u32 {s(sT+4)}, {s(sT+4)}, {FHID}
v_lshrrev_b32 v1, 2, v0
v_add_u32 v2, 65536, v0""")
NR = 8
for i in range(NR - 1):
    a(f"ds_read_b128 {v(64+4*i,4)}, v0 offset:{L_W1 + 1024*i}")
a("s_barrier")
poll_flags(1, 4, s(sT+1), 0xffff)
stamp("h2rdy")
LD = OPT.get("ld", 10)


def h2_load(ks):
    a(f"buffer_load_dwordx4 {v(128+4*ks,4)}, v0, {s(R_WS,4)}, {s(sT+2)} offen offset:{1024*(ks&3)} sc1")
    if ks & 3 == 3 and ks < 31:
        a(f"s_add_u32 {s(sT+2)}, {s(sT+2)}, 4096")


for ks in range(LD):
    h2_load(ks)
a("s_setprio 2")


def silu_ops(A):
    ops = []
    for i in range(16):
        ops.append(f"v_exp_f32 {v(16+i)}, {v(A+i)}")
    for i in range(16):
        ops.append(f"v_add_f32 {v(16+i)}, 1.0, {v(16+i)}")
    for i in range(16):
        ops.append(f"v_rcp_f32 {v(16+i)}, {v(16+i)}")
    for i in range(16):
        ops.append(f"v_mul_f32 {v(16+i)}, {v(A+i)}, {v(16+i)}")
    for i in range(8):
        ops.append(f"v_cvt_pk_bf16_f32 {v(8+i)}, {v(16+2*i)}, {v(17+2*i)}")
    return ops


def hid_store():
    return [local_stores([f"buffer_store_dwordx4 v[8:11], v0, {s(R_WS,4)}, {s(sT+3)} offen",
                          f"buffer_store_dwordx4 v[12:15], v0, {s(R_WS,4)}, {s(sT+3)} offen offset:1024"]),
            f"s_add_u32 {s(sT+3)}, {s(sT+3)}, 32768"]


def hid_flag():
    a("s_waitcnt vmcnt(0)")
    a(flag_store(4, s(sT+4)))
    a(f"s_add_u32 {s(sT+4)}, {s(sT+4)}, 64")


def ffn1_round(r):
    A = 32 if r % 2 == 0 else 48
    fill = []
    if r > 0:
        fill = silu_ops(48 if r % 2 == 0 else 32) + hid_store()
    cost = lambda o: 8 if o.startswith(("v_exp", "v_rcp")) else (16 if "\n" in o else 4)
    for ks in range(32):
        g = 32 * r + ks
        nxt = g + NR - 1
        if nxt < 96:
            off = L_W1 + 1024 * nxt
            a(f"ds_read_b128 {v(64+4*(nxt%NR),4)}, {'v0' if off < 65536 else 'v2'} offset:{off & 65535}")
        out = min(NR - 1, 95 - g)
        if r == 0:
            a(f"s_waitcnt vmcnt({min(LD - 1, 31 - ks)}) lgkmcnt({out})")
        elif ks % 2 == 0:
            a(f"s_waitcnt lgkmcnt({max(out - 1, 0)})")
        a(f"{MF32} {v(A,16)}, {v(64+4*(g%NR),4)}, {v(128+4*ks,4)}, {'0' if ks == 0 else v(A,16)}")
        if r == 0 and ks + LD < 32:
            h2_load(ks + LD)
        if ks == 8 and r == 2:
            hid_flag()
        elif ks >= 3:
            bud = 16 if ks % 2 else 20
            while fill and bud >= cost(fill[0]):
                bud -= cost(fill[0])
                a(fill.pop(0))
    for o in fill:
        a(o)
    stamp(f"r{r}")


ffn1_round(0)
ffn1_round(1)
a(f"s_cmp_lt_u32 {s(sJ16)}, 11\ns_cbranch_scc0 L_f1_two")
ffn1_round(2)
for variant, A in enumerate((32, 48)):
    o = silu_ops(A)
    a("\n".join(o[:40]))
    hid_flag()
    a("\n".join(o[40:] + hid_store()))
    hid_flag()
    if variant == 0:
        a("s_branch L_f1_done\nL_f1_two:")
a.label("L_f1_done")
a("s_setprio 0")
stamp("ffn1")
a("s_waitcnt lgkmcnt(0)\ns_barrier")
a("s_branch L_final")

a.label("L_s_q")
XR, vO, vLs, vON, vB0, vB1, vN4 = 4, 20, 21, 22, 23, 24, 25
WA, ACC, BF = 64, 32, 48
a(f"""s_lshl_b32 {s(sT+2)}, {s(sG8)}, 16
s_add_u32 {s(sT+2)}, {s(sT+2)}, {QB}""")
read_fast(26)
a(f"s_waitcnt vmcnt(0)\ns_setprio 2\ns_barrier")
stamp("b5")


def q_reads(ks):
    r = 160 + 8 * (ks % 8)
    a(f"ds_read_b64_tr_b16 {v(r,2)}, v128 offset:{L_WQ+ks*2048}\nds_read_b64_tr_b16 {v(r+2,2)}, v128 offset:{L_WQ+ks*2048+512}\nds_read_b128 {v(r+4,4)}, v129 offset:{32*ks}")


for ks in range(4):
    q_reads(ks)
a(f"""s_cmp_eq_u32 {s(sW)}, 7
s_cbranch_scc0 L_s_nofp
s_lshl_b32 {s(sT)}, {s(sSlot)}, 5
s_add_u32 {s(sT)}, {s(sT)}, {XID + 16}""")
a(flag_store(26, s(sT), local=False))
a.label("L_s_nofp")
extra = [f"v_mov_b32 {v(vO+i)}, {v(132+i)}" for i in range(6)]
for j in range(8):
    extra += [f"v_lshlrev_b32 {v(XR+2*j)}, 16, {v(140+j)}", f"v_and_b32 {v(XR+2*j+1)}, 0xffff0000, {v(140+j)}"]
for ks in range(32):
    if ks + 4 < 32:
        q_reads(ks + 4)
    a(f"s_waitcnt lgkmcnt({3*min(4, 31-ks)})")
    r = 160 + 8 * (ks % 8)
    a(f"{MF32} v[32:47], {v(r,4)}, {v(r+4,4)}, {'0' if ks == 0 else 'v[32:47]'}")
    if extra:
        a(extra.pop(0))
a(f"""v_mov_b32 v26, {f32(0.25*LOG2E)}
s_lshl_b32 {s(sT)}, {s(sSlot)}, 4
s_lshl_b32 {s(sT+1)}, {s(sSub)}, 2
s_add_u32 {s(sT)}, {s(sT)}, {s(sT+1)}
s_add_u32 {s(sT)}, {s(sT)}, {FQ}
v_lshrrev_b32 v1, 2, v0""")
for i in range(8):
    a(f"v_pk_mul_f32 {v(32+2*i,2)}, {v(32+2*i,2)}, v[26:27] op_sel:[0,0] op_sel_hi:[1,0]")
for i in range(8):
    a(f"v_cvt_pk_bf16_f32 {v(48+i)}, {v(32+2*i)}, {v(33+2*i)}")
a(f"""s_bitcmp1_b32 {s(sSub)}, 0
s_cbranch_scc1 L_q_noown
s_mov_b32 exec_lo, 0xff
s_mov_b32 exec_hi, 0xff
ds_write_b128 v131, v[48:51]
ds_write_b128 v131, v[52:55] offset:128
s_mov_b64 exec, -1
L_q_noown:""")
a(local_stores([f"buffer_store_dwordx4 v[48:51], v130, {s(R_WS,4)}, {s(sT+2)} offen",
                f"buffer_store_dwordx4 v[52:55], v130, {s(R_WS,4)}, {s(sT+2)} offen offset:128"]))
stamp("qgemm")
a("s_waitcnt lgkmcnt(0)\ns_barrier")
stamp("b6")
a("s_waitcnt vmcnt(0)")
a(flag_store(26, s(sT)))
stamp("qflag")
sPk0, sPk1, sPk2 = sLN + 4, sLN + 5, sLN + 6
a(f"""s_mov_b32 {s(sT)}, {s(sPkK)}
v_lshrrev_b32 v2, 8, v0
v_and_b32 v3, 0xf0, v0
s_cmp_lt_u32 {s(sT)}, 344
s_cbranch_scc0 L_pk_w1
s_lshr_b32 {s(sT+1)}, {s(sT)}, 2
s_and_b32 {s(sT+2)}, {s(sT)}, 3
s_lshl_b32 {s(sPk0)}, {s(sT+1)}, 14
s_lshl_b32 {s(sT+3)}, {s(sT+2)}, 8
s_add_u32 {s(sPk0)}, {s(sPk0)}, {s(sT+3)}
s_mov_b32 {s(sPk1)}, 4096
s_mov_b32 {s(sPk2)}, 4096
s_mul_i32 {s(sPkD)}, {s(sT+2)}, {4*86}
s_add_u32 {s(sPkD)}, {s(sPkD)}, {s(sT+1)}
s_lshl_b32 {s(sPkD)}, {s(sPkD)}, 10
s_add_u32 {s(sPkD)}, {s(sPkD)}, {W2P}
s_mov_b32 {s(sPkS)}, {86*1024}
v_lshl_add_u32 v2, v2, 10, v3
s_branch L_pk_done
L_pk_w1:
s_sub_u32 {s(sT)}, {s(sT)}, 344
s_mul_i32 {s(sT+1)}, {s(sT)}, 5958
s_lshr_b32 {s(sT+1)}, {s(sT+1)}, 16
s_mul_i32 {s(sT+2)}, {s(sT+1)}, 11
s_sub_u32 {s(sT+2)}, {s(sT)}, {s(sT+2)}
s_lshr_b32 {s(sT+3)}, {s(sT+1)}, 1
s_lshl_b32 {s(sT+3)}, {s(sT+3)}, 5
s_and_b32 {s(sT+4)}, {s(sT+1)}, 1
s_lshl_b32 {s(sT+4)}, {s(sT+4)}, 3
s_add_u32 {s(sT+3)}, {s(sT+3)}, {s(sT+4)}
s_mul_i32 {s(sPk0)}, {s(sT+3)}, 2752
s_lshl_b32 {s(sT+3)}, {s(sT+2)}, 8
s_add_u32 {s(sPk0)}, {s(sPk0)}, {s(sT+3)}
s_mov_b32 {s(sPk1)}, {4*2752}
s_mov_b32 {s(sPk2)}, {12*2752}
s_lshl_b32 {s(sPkD)}, {s(sT+2)}, 7
s_add_u32 {s(sPkD)}, {s(sPkD)}, {s(sT+1)}
s_lshl_b32 {s(sPkD)}, {s(sPkD)}, 10
s_add_u32 {s(sPkD)}, {s(sPkD)}, {W1P}
s_mov_b32 {s(sPkS)}, {32*1024}
v_mul_u32_u24 v2, 2752, v2
v_add_u32 v2, v2, v3
L_pk_done:""")
assert all((p * 5958) >> 16 == p // 11 for p in range(352))
a(f"""s_lshl_b32 {s(sT)}, {s(sG8)}, 7
s_add_u32 {s(sT)}, {s(sT)}, {FQ}""")
poll_flags(1, 26, s(sT), 0xffffffff)
a(f"""s_lshl_b32 {s(sT)}, {s(sSlot)}, 13
s_lshl_b32 {s(sT+1)}, {s(sSub)}, 11
s_add_u32 {s(sT)}, {s(sT)}, {s(sT+1)}
s_add_u32 {s(sT)}, {s(sT)}, {QB}
buffer_load_dwordx4 v[48:51], v0, {s(R_WS,4)}, {s(sT)} offen sc1
buffer_load_dwordx4 v[52:55], v0, {s(R_WS,4)}, {s(sT)} offen offset:1024 sc1
s_add_u32 {s(sT+1)}, {s(sT+1)}, {L_Q}
v_add_u32 v1, {s(sT+1)}, v0
v_mov_b32 v26, {L_QCNT}
v_mov_b32 v27, 1
v_lshrrev_b32 v3, 6, v0
v_lshlrev_b32 v3, 9, v3
v_and_b32 v28, 0x30, v0
v_lshl_add_u32 v3, v28, 1, v3
s_lshl_b32 {s(sT)}, {s(sSub)}, 7
s_add_u32 {s(sT)}, {s(sT)}, {XID + 16}
s_waitcnt vmcnt(1)
ds_write_b128 v1, v[48:51]
s_waitcnt vmcnt(0)
ds_write_b128 v1, v[52:55] offset:1024
s_mov_b64 exec, 1
ds_add_u32 v26, v27
s_mov_b64 exec, -1""")
stamp("qgot")
poll_flags(3, 28, s(sT), None)


def wo_base():
    a(f"""s_add_u32 {s(sT)}, {s(sI)}, {s(sJ8)}
    s_and_b32 {s(sT)}, {s(sT)}, 7
    s_lshl_b32 {s(sT)}, {s(sT)}, 16
    s_lshl_b32 {s(sT+1)}, {s(sSub)}, 14
    s_add_u32 {s(sT)}, {s(sT)}, {s(sT+1)}
    s_add_u32 {s(sT)}, {s(sT)}, {WOP}""")


def wo_load(f):
    a(f"buffer_load_dwordx4 {v(WA+4*f,4)}, v0, {s(R_WS,4)}, {s(sT)} offen offset:{1024*(f&3)}")
    if f & 3 == 3 and f < 15:
        a(f"s_add_u32 {s(sT)}, {s(sT)}, 4096")


def wo_mfma(after):
    for ks in range(2):
        for c in range(2):
            for j in range(4):
                f = 8 * ks + 4 * c + j
                a(f"{MF16} {v(ACC+4*j,4)}, {v(WA+4*f,4)}, {v(BF+8*ks+4*c,4)}, {v(ACC+4*j,4)}")
                after(f)


a(f"""s_cmp_lt_u32 {s(sPkK)}, 696
s_cbranch_scc0 L_s_loop0
s_lshl_b32 m0, {s(sSub)}, 12
s_add_u32 {s(sT+1)}, {s(sPk0)}, {s(sPk1)}
buffer_load_dwordx4 v2, {s(R_PK,4)}, {s(sPk0)} offen lds
s_add_u32 m0, m0, 1024
s_add_u32 {s(sPk0)}, {s(sT+1)}, {s(sPk2)}
buffer_load_dwordx4 v2, {s(R_PK,4)}, {s(sT+1)} offen lds
s_add_u32 m0, m0, 1024
s_add_u32 {s(sT+1)}, {s(sPk0)}, {s(sPk1)}
buffer_load_dwordx4 v2, {s(R_PK,4)}, {s(sPk0)} offen lds
s_add_u32 m0, m0, 1024
s_nop 0
buffer_load_dwordx4 v2, {s(R_PK,4)}, {s(sT+1)} offen lds""")
assert L_PKS == 0
a.label("L_s_loop0")
a(f"s_mov_b32 {s(sI)}, 0")
wo_base()
for f in range(16):
    wo_load(f)
    a(f"v_mov_b32 {v(ACC+f)}, 0")
a(f"""s_mov_b64 {s(sBad,2)}, 0
s_mov_b32 {s(sLN)}, {f32(2.0**-40)}
s_mov_b32 {s(sLN+1)}, {f32(2.0**60)}""")
stamp("wold")
a.label("L_s_loop")
a("s_waitcnt lgkmcnt(0)\ns_barrier")
for w in range(4):
    a(f"ds_read_b32 {v(BF+8+w)}, {v(vLs)} offset:{3072*w}")
for w in range(4):
    a(f"ds_read_b64 {v(BF+2*w,2)}, {v(vO)} offset:{3072*w}")
a(f"""s_waitcnt lgkmcnt(4)
v_add_f32 {v(BF+8)}, {v(BF+8)}, {v(BF+9)}
v_add_f32 {v(BF+10)}, {v(BF+10)}, {v(BF+11)}
v_add_f32 {v(BF+8)}, {v(BF+8)}, {v(BF+10)}
v_rcp_f32 {v(BF+9)}, {v(BF+8)}
s_waitcnt lgkmcnt(2)
v_add_f32 {v(BF)}, {v(BF)}, {v(BF+2)}
v_add_f32 {v(BF+1)}, {v(BF+1)}, {v(BF+3)}
s_waitcnt lgkmcnt(0)
v_add_f32 {v(BF+4)}, {v(BF+4)}, {v(BF+6)}
v_add_f32 {v(BF+5)}, {v(BF+5)}, {v(BF+7)}
v_add_f32 {v(BF)}, {v(BF)}, {v(BF+4)}
v_add_f32 {v(BF+1)}, {v(BF+1)}, {v(BF+5)}
v_mul_f32 {v(BF)}, {v(BF)}, {v(BF+9)}
v_mul_f32 {v(BF+1)}, {v(BF+1)}, {v(BF+9)}
v_cvt_pk_bf16_f32 {v(BF)}, {v(BF)}, {v(BF+1)}
ds_write_b32 {v(vON)}, {v(BF)}
v_cmp_nle_f32 vcc, {s(sLN)}, {v(BF+8)}
v_cmp_nge_f32 {s(sBad,2)}, {s(sLN+1)}, {v(BF+8)}
s_add_u32 {s(sI)}, {s(sI)}, 1
s_or_b64 {s(sBad,2)}, {s(sBad,2)}, vcc
s_cbranch_scc0 L_s_ok
v_mov_b32 v26, {L_BAD}
v_mov_b32 v27, 1
ds_write_b32 v26, v27
L_s_ok:
s_cmp_lt_u32 {s(sI)}, 8
s_waitcnt lgkmcnt(0)
s_barrier""")
for ks in range(2):
    for c in range(2):
        a(f"ds_read_b128 {v(BF+8*ks+4*c,4)}, {v(vB0+c)} offset:{512*ks}")
a(f"s_cbranch_scc0 L_s_done")
wo_base()
a("s_waitcnt vmcnt(0) lgkmcnt(0)")
X = OPT.get("x", 0)
if X == 0:
    wo_mfma(wo_load)
elif X == 1:
    a("s_branch L_s_loop")
elif X == 2:
    for f in range(16):
        wo_load(f)
    a("s_branch L_s_loop")
elif X == 3:
    wo_mfma(wo_load)
    a("s_branch L_s_loop")
elif X == 4:
    wo_mfma(lambda f: None)
    a("s_branch L_s_loop")
a(f"""s_cmp_eq_u32 {s(sSafe)}, 0
s_cbranch_scc0 L_s_loop
s_cmp_lt_u32 {s(sI)}, 4
s_cbranch_scc0 L_s_pf
s_cmp_eq_u32 {s(sI)}, 2
s_cbranch_scc1 L_s_slot1
s_cmp_eq_u32 {s(sI)}, 3
s_cbranch_scc1 L_s_slot2""")
a(f"""s_cmp_lt_u32 {s(sPkK)}, 696
s_cbranch_scc0 L_s_loop
s_lshl_b32 {s(sT)}, {s(sSub)}, 12
v_bfe_u32 v27, v0, 4, 2
v_lshlrev_b32 v27, 3, v27
v_bfe_u32 v28, v0, 6, 2
v_lshrrev_b32 v26, 9, v0
v_lshl_add_u32 v26, v26, 2, v28
v_lshlrev_b32 v26, 8, v26
v_bfe_u32 v28, v0, 8, 1
v_lshl_add_u32 v26, v28, 5, v26
v_add3_u32 v26, v26, v27, {s(sT)}""")
for e in range(4):
    for j in range(2):
        a(f"ds_read_b64_tr_b16 {v(128+4*e+2*j,2)}, v26 offset:{e*64+j*2048}")
for e in range(4):
    a(f"s_waitcnt lgkmcnt({6-2*e})\nbuffer_store_dwordx4 {v(128+4*e,4)}, v0, {s(R_WS,4)}, {s(sPkD)} offen sc1")
    if e < 3:
        a(f"s_add_u32 {s(sPkD)}, {s(sPkD)}, {s(sPkS)}")
a("s_waitcnt vmcnt(0)")
stamp("sl0")
a("s_branch L_s_loop")
a(f"L_s_slot1:\ns_cmp_lt_u32 {s(sW)}, 6\ns_cbranch_scc0 L_s_loop")
mod_pub_addr()
a(f"""s_lshl_b32 {s(sT+1)}, {s(sSub)}, 5
s_add_u32 {s(sT+1)}, {s(sT+1)}, {L_MODX}
v_add_u32 v26, {s(sT+1)}, v0
s_mov_b64 exec, 3
ds_read_b128 v[28:31], v26
s_lshl_b32 {s(sT+1)}, {s(sSub)}, 12
s_add_u32 {s(sT)}, {s(sT)}, {s(sT+1)}
s_add_u32 {s(sT)}, {s(sT)}, 4096
s_waitcnt lgkmcnt(0)
buffer_store_dwordx4 v[28:31], v0, {s(R_WS,4)}, {s(sT)} offen sc1
s_mov_b64 exec, -1
s_branch L_s_loop""")
a("L_s_slot2:")
tag_bytes()
G = 128
a(f"""s_lshl_b32 {s(sT)}, {s(sSub)}, 11
s_add_u32 {s(sT)}, {s(sT)}, {MODG + 4096}
s_add_u32 {s(sT+1)}, {s(sT)}, 12288
s_mov_b32 {s(sCnt)}, 0
L_poll3:
buffer_load_dwordx4 {v(G,4)}, v0, {s(R_WS,4)}, {s(sT)} offen sc1
buffer_load_dwordx4 {v(G+4,4)}, v0, {s(R_WS,4)}, {s(sT)} offen offset:1024 sc1
buffer_load_dwordx4 {v(G+8,4)}, v0, {s(R_WS,4)}, {s(sT+1)} offen sc1
buffer_load_dwordx4 {v(G+12,4)}, v0, {s(R_WS,4)}, {s(sT+1)} offen offset:1024 sc1""")
spin_guard()
a("s_waitcnt vmcnt(0)")
for i in range(4):
    tag_strip(G + 4 * i, 26, i == 0)
a(f"v_and_b32 v26, 0xff, v26\nv_cmp_ne_u32 vcc, 0, v26\ns_cbranch_vccnz L_poll3")
for i in range(8):
    a(f"v_add_f32 {v(G+i)}, {v(G+i)}, {v(G+8+i)}")
round_bf16(G, 8, G + 8)
a(f"s_cmp_eq_u32 {s(sSub)}, 2\ns_cbranch_scc0 L_s_noadd")
for i in range(8):
    a(f"v_add_f32 {v(G+i)}, 1.0, {v(G+i)}")
round_bf16(G, 8, G + 8)
a(f"""L_s_noadd:
s_cmp_eq_u32 {s(sSub)}, 0
s_cselect_b32 {s(sT)}, 1.0, {f32(-LOG2E)}
s_cmp_eq_u32 {s(sSub)}, 3
s_cselect_b32 {s(sT)}, {f32(-1.0/LOG2E)}, {s(sT)}""")
for i in range(8):
    a(f"v_mul_f32 {v(G+i)}, {s(sT)}, {v(G+i)}")
a(f"""s_lshl_b32 {s(sT)}, {s(sSub)}, 11
s_add_u32 {s(sT)}, {s(sT)}, {L_MOD2}
v_add_u32 v1, {s(sT)}, v0
ds_write_b128 v1, {v(G,4)}
ds_write_b128 v1, {v(G+4,4)} offset:1024
s_mul_i32 {s(sT)}, {s(sJ8)}, {2*86*1024}
s_lshl_b32 {s(sT+1)}, {s(sSub)}, 13
s_add_u32 {s(sT)}, {s(sT)}, {s(sT+1)}
s_add_u32 {s(sPkD)}, {s(sT)}, {W2P}
s_add_u32 {s(sPkS)}, {s(sPkD)}, {86*1024}""")
stamp("sl2")
a("s_branch L_s_loop")
a(f"""L_s_pf:
s_lshl_b32 {s(sT+3)}, {s(sSub)}, 13
s_cmp_eq_u32 {s(sI)}, 7
s_cbranch_scc1 L_s_pf6
s_sub_u32 {s(sT)}, {s(sI)}, 4
s_lshl_b32 {s(sT+1)}, {s(sT)}, 4
s_add_u32 {s(sT+1)}, {s(sT+1)}, {s(sJ16)}
s_min_u32 {s(sT+1)}, {s(sT+1)}, 43
s_lshl_b32 {s(sT+1)}, {s(sT+1)}, 15
s_add_u32 {s(sT+1)}, {s(sT+1)}, {s(sT+3)}
s_add_u32 {s(sT+1)}, {s(sT+1)}, {W1P}
s_add_u32 {s(sT+2)}, {s(sT+1)}, 4096
s_lshl_b32 {s(sT)}, {s(sT)}, 15
s_add_u32 m0, {s(sT)}, {s(sT+3)}
s_branch L_s_pfdma
L_s_pf6:
s_lshl_b32 {s(sT)}, {s(sSub)}, 11
s_sub_u32 {s(sT)}, {64*1024}, {s(sT)}
s_add_u32 {s(sT+1)}, {s(sPkD)}, {s(sT)}
s_add_u32 {s(sT+2)}, {s(sPkS)}, {s(sT)}
s_add_u32 m0, {s(sT+3)}, {L_W2}
L_s_pfdma:""")
assert L_W1 == 0
for h in range(2):
    for q in range(4):
        a(f"buffer_load_dwordx4 v0, {s(R_WS,4)}, {s(sT+1+h)} offen offset:{1024*q} lds")
    if h == 0:
        a("s_add_u32 m0, m0, 4096")
wloc = {}
for n in range(4):
    r, k0 = n // 2, 4 * (n % 2)
    if n < 3:
        a(f"s_cmp_eq_u32 {s(sI)}, {4+n}\ns_cbranch_scc0 L_s_pfw{n+1}")
    off = 32768 * r + 1024 * k0
    a(f"s_add_u32 {s(sT)}, {s(sPkD)}, {off}\ns_add_u32 {s(sT+1)}, {s(sPkS)}, {off}")
    for k in range(4):
        for cb in range(2):
            reg = (192 if r == 0 else 128) + 8 * (k0 + k) + 4 * cb
            wloc[("W", r, k0 + k, cb)] = reg
            a(f"buffer_load_dwordx4 {v(reg,4)}, v0, {s(R_WS,4)}, {s(sT+cb)} offen offset:{1024*k}")
    if n == 0:
        stamp("sl3")
    if n == 3:
        stamp("sl6")
    a("s_branch L_s_loop")
    if n < 3:
        a.label(f"L_s_pfw{n+1}")
a.label("L_s_done")
if OPT["stop"] == 2:
    a("s_branch L_end")
a(f"""v_mov_b32 v26, {L_BAD}
ds_read_b32 v26, v26
v_bfe_u32 v27, v0, 4, 3
v_lshrrev_b32 v28, 9, v0
v_lshlrev_b32 v28, 7, v28
v_lshl_add_u32 v28, v27, 4, v28
s_lshl_b32 {s(sT+1)}, {s(sSub)}, 2
s_add_u32 {s(sT+1)}, {s(sT+1)}, {L_STAT}
v_add_u32 v28, {s(sT+1)}, v28
s_waitcnt vmcnt(0) lgkmcnt(0)
v_readfirstlane_b32 {s(sT)}, v26""")
GA, CB, SB = WA, WA + 16, WA + 32


def const_read(f):
    if f < 12:
        a(f"ds_read_b128 {v(WA+4*f,4)}, {v(vN4)} offset:{(0, 4096, 2048)[f//4] + 64*(f%4)}")


wo_mfma(const_read)
a(f"""s_cmp_lg_u32 {s(sT)}, {s(sSafe)}
s_cbranch_scc1 L_s_safe
s_lshl_b32 {s(sT)}, {s(sSlot)}, 14
s_lshl_b32 {s(sT+1)}, {s(sSub)}, 12
s_add_u32 {s(sT)}, {s(sT)}, {s(sT+1)}
s_add_u32 {s(sT)}, {s(sT)}, {X1}
v_lshlrev_b32 v27, 4, v27
v_add_u32 v26, {L_STAT}, v27
s_waitcnt lgkmcnt(8)""")
stamp("wo")
T0 = BF
for i in range(8):
    a(f"v_pk_fma_f32 {v(ACC+2*i,2)}, {v(ACC+2*i,2)}, {v(GA+2*i,2)}, {v(XR+2*i,2)}")
a(f"v_pk_add_f32 {v(T0,2)}, {v(ACC,2)}, {v(ACC+2,2)}\nv_pk_mul_f32 {v(T0+2,2)}, {v(ACC,2)}, {v(ACC,2)}")
for i in range(1, 8):
    if i > 1:
        a(f"v_pk_add_f32 {v(T0,2)}, {v(T0,2)}, {v(ACC+2*i,2)}")
    a(f"v_pk_fma_f32 {v(T0+2,2)}, {v(ACC+2*i,2)}, {v(ACC+2*i,2)}, {v(T0+2,2)}")
a(f"""v_add_f32 {v(T0)}, {v(T0)}, {v(T0+1)}
v_add_f32 {v(T0+2)}, {v(T0+2)}, {v(T0+3)}
v_bfe_u32 v29, v0, 7, 1
v_lshl_add_u32 v27, v29, 12, v27
v_permlane32_swap_b32 {v(T0)}, {v(T0+2)}
v_add_f32 {v(T0)}, {v(T0)}, {v(T0+2)}
v_lshrrev_b32 v29, 8, v0
v_lshl_add_u32 v27, v29, 9, v27
v_add_f32_dpp {v(T0)}, {v(T0)}, {v(T0)} row_ror:8 row_mask:0xf bank_mask:0xf
v_mov_b32 {v(T0+1)}, {v(T0)}
v_mov_b32 v30, {f32(1.0/512)}
v_mov_b32 v31, {f32(1e-5)}
v_permlane16_swap_b32 {v(T0)}, {v(T0+1)}
v_add_f32 {v(T0)}, {v(T0)}, {v(T0+1)}
ds_write_b32 v28, {v(T0)}
s_lshr_b32 {s(sT+2)}, {s(sSlot)}, 2
s_lshl_b32 {s(sT+2)}, {s(sT+2)}, 15
s_and_b32 {s(sT+1)}, {s(sSlot)}, 3
s_lshl_b32 {s(sT+1)}, {s(sT+1)}, 7
s_add_u32 {s(sT+2)}, {s(sT+2)}, {s(sT+1)}
s_lshl_b32 {s(sT+1)}, {s(sSub)}, 13
s_add_u32 {s(sT+2)}, {s(sT+2)}, {s(sT+1)}
s_add_u32 {s(sT+2)}, {s(sT+2)}, {H2}
s_waitcnt lgkmcnt(0)
s_barrier""")
stamp("b8")
a(f"ds_read_b128 {v(T0,4)}, v26\nds_read_b128 {v(T0+4,4)}, v26 offset:128")
a(local_stores([f"buffer_store_dwordx4 {v(ACC+4*j,4)}, v0, {s(R_WS,4)}, {s(sT)} offen offset:{1024*j}" for j in range(4)]))
a(f"""s_lshl_b32 {s(sT)}, {s(sSlot)}, 4
s_lshl_b32 {s(sT+1)}, {s(sSub)}, 2
s_add_u32 {s(sT)}, {s(sT)}, {s(sT+1)}
s_add_u32 {s(sT)}, {s(sT)}, {FH2}
s_waitcnt lgkmcnt(1)
v_pk_add_f32 {v(T0,2)}, {v(T0,2)}, {v(T0+2,2)}
s_waitcnt lgkmcnt(0)
v_pk_add_f32 {v(T0+4,2)}, {v(T0+4,2)}, {v(T0+6,2)}
v_add_f32 {v(T0)}, {v(T0)}, {v(T0+1)}
v_add_f32 {v(T0+4)}, {v(T0+4)}, {v(T0+5)}
v_mul_f32 {v(T0)}, v30, {v(T0)}
v_fma_f32 {v(T0+4)}, {v(T0+4)}, v30, v31
v_fma_f32 {v(T0+4)}, -{v(T0)}, {v(T0)}, {v(T0+4)}
v_max_f32 {v(T0+4)}, v31, {v(T0+4)}
v_rsq_f32 {v(T0+2)}, {v(T0+4)}
v_mul_f32_e64 {v(T0+3)}, {v(T0)}, -{v(T0+2)}""")
for i in range(8):
    a(f"v_pk_fma_f32 {v(XR+2*i,2)}, {v(ACC+2*i,2)}, {v(T0+2,2)}, {v(T0+2,2)} op_sel:[0,0,1] op_sel_hi:[1,0,1]")
for i in range(8):
    a(f"v_pk_fma_f32 {v(XR+2*i,2)}, {v(XR+2*i,2)}, {v(CB+2*i,2)}, {v(SB+2*i,2)}")
for i in range(8):
    a(f"v_cvt_pk_bf16_f32 {v(T0+8+i)}, {v(XR+2*i)}, {v(XR+2*i+1)}")
a(local_stores([f"buffer_store_dwordx4 {v(T0+8,4)}, v27, {s(R_WS,4)}, {s(sT+2)} offen",
                f"buffer_store_dwordx4 {v(T0+12,4)}, v27, {s(R_WS,4)}, {s(sT+2)} offen offset:2048"]))
stamp("h2st")
a("s_waitcnt vmcnt(0)")
a(flag_store(26, s(sT)))
stamp("h2pub")
a("s_setprio 0")
F2 = 4
sHB = sLN
sFl = sLN + 2
sW2 = (sPkD, sPkS)
steps = [(0, k) for k in range(8)] + [(1, k) for k in range(8)] + [(2, k) for k in range(6)]
a(f"""s_mul_i32 {s(sHB)}, {s(sG8)}, {2*86*1024}
s_lshl_b32 {s(sT)}, {s(sSub)}, 13
s_add_u32 {s(sHB)}, {s(sHB)}, {s(sT)}
s_add_u32 {s(sHB)}, {s(sHB)}, {HID}
s_add_u32 {s(sHB+1)}, {s(sHB)}, {86*1024}
s_lshl_b32 {s(sFl)}, {s(sG8)}, 9
s_add_u32 {s(sFl)}, {s(sFl)}, {FHID}
s_lshl_b32 {s(sFl+1)}, {s(sSub)}, 11
s_sub_u32 {s(sFl+1)}, {64*1024}, {s(sFl+1)}
v_bfe_u32 v2, v0, 4, 2
v_bfe_u32 v1, v0, 6, 1
v_lshlrev_b32 v1, 8, v1
v_lshl_add_u32 v1, v2, 2, v1
s_add_u32 {s(sT)}, {s(sT)}, {L_W2}
v_add_u32 v2, {s(sT)}, v0""")
free = list(range(68, 128, 4))
loc = dict(wloc)
outstanding = []


def f2_load(kind, r, k, x):
    reg = free.pop(0)
    loc[(kind, r, k, x)] = reg
    if kind == "W" and k < 4:
        a(f"ds_read_b128 {v(reg,4)}, v2 offset:{4096*x + 1024*k}")
        return
    base = (sW2 if kind == "W" else (sHB, sHB + 1))[x]
    off = (32 * r + k) * 1024 if r < 2 else k * 1024
    hi, lo = off & ~4095, off & 4095
    if r < 2:
        a(f"s_add_u32 {s(sT)}, {s(base)}, {hi}")
    else:
        a(f"s_add_u32 {s(sT)}, {s(base)}, {s(sFl+1)}")
        if hi:
            a(f"s_add_u32 {s(sT)}, {s(sT)}, {hi}")
    a(f"buffer_load_dwordx4 {v(reg,4)}, v0, {s(R_WS,4)}, {s(sT)} offen offset:{lo}{' sc1' if kind == 'B' else ''}")
    outstanding.append((kind, r, k, x))


def f2_poll(r):
    if r < 2:
        a(f"s_lshl_b32 {s(sT)}, {s(sSub)}, 4\ns_add_u32 {s(sT)}, {s(sT)}, {s(sFl)}\ns_add_u32 {s(sT)}, {s(sT)}, {64*r}")
        poll_flags(1, 3, s(sT), 0xff, nap=2 if r == 0 else 0)
    else:
        a(f"""s_mul_i32 {s(sT)}, {s(sSub)}, 12
        s_add_u32 {s(sT)}, {s(sT)}, {s(sFl)}
        s_add_u32 {s(sT)}, {s(sT)}, 128
        s_cmp_eq_u32 {s(sSub)}, 3
        s_cselect_b32 exec_lo, 0x33, 0x77
        s_mov_b32 exec_hi, 0""")
        poll_flags(1, 3, s(sT), None)
    outstanding.clear()
    stamp(f"hid{r}")


pend = []
for r, k in steps:
    for x in range(2):
        if r == 2:
            pend.append(("W", r, k, x))
    for x in range(2):
        pend.append(("B", r, k, x))
polled = set()
f2_poll(0)
polled.add(0)
while free and pend and pend[0][1] == 0:
    f2_load(*pend.pop(0))
POLL_AT = {(0, OPT.get("p1", 0)): 1, (1, OPT.get("p2", 2)): 2}
first = {0: True, 1: True, 2: True, 3: True}
PER = 3


def issue_some(n):
    i = 0
    while free and i < len(pend) and n > 0:
        p = pend[i]
        if p[0] == "B" and p[1] not in polled:
            i += 1
            continue
        f2_load(*pend.pop(i))
        n -= 1


for r, k in steps:
    if (r, k) in POLL_AT:
        f2_poll(POLL_AT[(r, k)])
        polled.add(POLL_AT[(r, k)])
    if (r, k) == (2, 0):
        a("s_waitcnt lgkmcnt(0)")
    if (r, k) == (2, 4):
        a(f"s_cmp_eq_u32 {s(sSub)}, 3\ns_cbranch_scc1 L_f2_done")
    needk = [(kind, r, k, x) for kind in "WB" for x in range(2)]
    idx = [outstanding.index(n) for n in needk if n in outstanding]
    assert all(n in loc for n in needk), (r, k)
    if idx:
        m = max(idx)
        a(f"s_waitcnt vmcnt({len(outstanding) - 1 - m})")
        del outstanding[:m + 1]
    for rb in range(2):
        for cb in range(2):
            b = 2 * rb + cb
            A = F2 + 16 * b
            a(f"{MF32} {v(A,16)}, {v(loc[('W', r, k, cb)],4)}, {v(loc[('B', r, k, rb)],4)}, {'0' if first[b] else v(A,16)}")
            first[b] = False
            issue_some(1)
    for n in needk:
        free.append(loc[n])
    if r == 1 and k == 7:
        assert not [p for p in pend if p[0] == "W" and p[2] < 4]
assert not pend
a.label("L_f2_done")
a("s_waitcnt vmcnt(0)")
stamp("ffn2")
a("s_barrier")
stamp("b9")
RS = 1088
a(f"s_mul_i32 {s(sT)}, {s(sSub)}, {16*RS}\nv_add_u32 v1, {s(sT)}, v0")
for b in range(4):
    for g in range(4):
        a(f"ds_write_b128 v1, {v(F2+16*b+4*g,4)} offset:{L_RED + (4*b+g)*RS}")
a.label("L_final")
a(f"""v_lshrrev_b32 v68, 7, v0
v_bfe_u32 v69, v0, 4, 3
s_lshl_b32 {s(sT)}, {s(sG8)}, 3
s_add_u32 {s(sT)}, {s(sT)}, {s(sW)}
s_lshl_b32 {s(sT+2)}, {s(sT)}, 13
s_lshl_b32 {s(sT+3)}, {s(sJ8)}, 7
s_add_u32 {s(sT+2)}, {s(sT+2)}, {s(sT+3)}
s_lshl_b32 {s(sT+4)}, {s(sT)}, 14
s_lshr_b32 {s(sT+3)}, {s(sJ8)}, 1
s_lshl_b32 {s(sT+3)}, {s(sT+3)}, 12
s_add_u32 {s(sT+4)}, {s(sT+4)}, {s(sT+3)}
s_and_b32 {s(sT+3)}, {s(sJ8)}, 1
s_lshl_b32 {s(sT+3)}, {s(sT+3)}, 7
s_add_u32 {s(sT+4)}, {s(sT+4)}, {s(sT+3)}
s_add_u32 {s(sT+4)}, {s(sT+4)}, {X1}
v_lshlrev_b32 v71, 9, v69
v_lshl_add_u32 v71, v68, 4, v71
buffer_load_dwordx4 v[72:75], v71, {s(R_WS,4)}, {s(sT+4)} offen sc1
buffer_load_dwordx4 v[76:79], v71, {s(R_WS,4)}, {s(sT+4)} offen offset:256 sc1
v_lshlrev_b32 v70, 10, v68
v_lshl_add_u32 v70, v69, 4, v70
s_lshl_b32 {s(sT+3)}, {s(sJ8)}, 8
s_add_u32 {s(sT+3)}, {s(sT+3)}, {L_MOD2 + 6144}
v_lshlrev_b32 v71, 5, v69
v_add_u32 v71, {s(sT+3)}, v71
ds_read_b128 v[80:83], v71
ds_read_b128 v[84:87], v71 offset:16
v_mul_u32_u24 v69, {RS}, v69
v_lshl_add_u32 v69, v68, 4, v69
s_lshr_b32 {s(sT+3)}, {s(sW)}, 2
s_mul_i32 {s(sT+3)}, {s(sT+3)}, {8*RS}
s_lshl_b32 {s(sT+5)}, {s(sSub)}, 7
s_add_u32 {s(sT+3)}, {s(sT+3)}, {s(sT+5)}
v_add_u32 v69, {s(sT+3)}, v69
s_waitcnt lgkmcnt(0)
s_barrier""")
stamp("b10")
for q in range(4):
    for h in range(2):
        a(f"ds_read_b128 {v(88+8*q+4*h,4)}, v69 offset:{L_RED + q*16*RS + h*512}")
a("s_waitcnt lgkmcnt(4)")
for i in range(4):
    a(f"v_pk_add_f32 {v(88+2*i,2)}, {v(88+2*i,2)}, {v(96+2*i,2)}")
a("s_waitcnt lgkmcnt(0)")
for i in range(4):
    a(f"v_pk_add_f32 {v(104+2*i,2)}, {v(104+2*i,2)}, {v(112+2*i,2)}")
for i in range(4):
    a(f"v_pk_add_f32 {v(88+2*i,2)}, {v(88+2*i,2)}, {v(104+2*i,2)}")
a("s_waitcnt vmcnt(0)")
for i in range(4):
    a(f"v_pk_fma_f32 {v(88+2*i,2)}, {v(88+2*i,2)}, {v(80+2*i,2)}, {v(72+2*i,2)}")
for i in range(4):
    a(f"v_cvt_pk_bf16_f32 {v(72+i)}, {v(88+2*i)}, {v(89+2*i)}")
a(f"buffer_store_dwordx4 v[72:75], v70, {s(R_OUT,4)}, {s(sT+2)} offen {OPT.get('ost', '')}")
stamp("done")
a.label("L_end")
a("s_mov_b64 exec, -1")
a(f"s_or_b32 {s(sT)}, s2, {s(sW)}\ns_cmp_eq_u32 {s(sT)}, 0\ns_cbranch_scc0 L_noep")
a(flag_store(4, EPOCH, local=False))
a.label("L_noep")
if DIAG:
    a("s_waitcnt lgkmcnt(0)\nv_mov_b32 v4, 0")
    for k in range(12):
        a(f"v_writelane_b32 v4, {s(4+2*k)}, {k}")
    a(f"""v_writelane_b32 v4, {s(sRetry)}, 12
    v_writelane_b32 v4, {s(sFast)}, 13
    s_lshl_b32 {s(sT)}, s2, 3
    s_add_u32 {s(sT)}, {s(sT)}, {s(sW)}
    s_lshl_b32 {s(sT)}, {s(sT)}, 6
    s_add_u32 {s(sT)}, {s(sT)}, {STAMP}
    v_lshrrev_b32 v5, 2, v0
    s_mov_b64 exec, 0xffff
    buffer_store_dword v4, v5, {s(R_WS,4)}, {s(sT)} offen""")
a.label("L_exit")
a("s_endpgm")
a.label("L_codeend")


for g in range(2, 8):
    a.label(f"L_gretry{g}")
    a("\n".join(group_loads(g)))
    a(f"s_add_u32 {s(sRetry)}, {s(sRetry)}, 1\ns_cmp_gt_u32 {s(sRetry)}, {SPIN}\ns_cbranch_scc1 L_end\ns_waitcnt vmcnt(0)\ns_branch L_gchk{g}")
a(f"""L_qwait:
v_mov_b32 v1, {L_QCNT}
ds_read_b32 v1, v1""")
spin_guard()
a(f"""s_waitcnt lgkmcnt(0)
v_readfirstlane_b32 {s(sT)}, v1
s_cmp_lg_u32 {s(sT)}, 4
s_cbranch_scc1 L_qwait
s_branch L_qok""")
for L, instrs in slow_out:
    a.label(L + "s")
    for t in instrs:
        a(t + (" sc1" if t.startswith("buffer_store") else ""))
    a(f"s_branch {L}b")

a.label("L_s_safe")
a(f"s_mov_b32 {s(sSafe)}, 1\ns_waitcnt lgkmcnt(0)\ns_barrier\ns_barrier\ns_branch L_s_loop0")
a.label("L_a_safe")
a(f"""s_mov_b32 {s(sSafe)}, 1
v_lshrrev_b32 v1, 2, v0
s_lshl_b32 {s(sT)}, {s(sW)}, 8
s_add_u32 {s(sT)}, {s(sT)}, {L_M}
v_add_u32 v1, {s(sT)}, v1
v_mov_b32 v8, 0xff800000
ds_write_b32 v1, v8
s_waitcnt lgkmcnt(0)
s_barrier
v_add_u32 v2, {L_Q}, v0
v_bfe_u32 v1, v0, 4, 5
v_lshlrev_b32 v1, 2, v1
v_add_u32 v1, {L_M}, v1
s_mov_b32 {s(sI)}, 0
L_safe1:
ds_read_b128 {v(Qr,4)}, v2
v_mov_b32 v8, 0xff800000
s_waitcnt lgkmcnt(0)""")
for kb in range(16):
    a(f"{MF32} {v(S0,16)}, {v(Kr+4*kb,4)}, {v(Qr,4)}, 0")
    for i in range(0, 16, 2):
        a(f"v_max3_f32 v8, v8, {v(S0+i)}, {v(S0+i+1)}")
a(f"""ds_max_f32 v1, v8
v_add_u32 v1, 128, v1
v_add_u32 v2, 1024, v2
s_add_u32 {s(sI)}, {s(sI)}, 1
s_cmp_lt_u32 {s(sI)}, 8
s_cbranch_scc1 L_safe1
s_waitcnt lgkmcnt(0)
s_barrier
v_add_u32 v2, {L_Q}, v0
v_subrev_u32 v1, 1024, v1
s_mov_b32 {s(sI)}, 0
L_safe2:
ds_read_b128 {v(Qr,4)}, v2
ds_read_b32 v8, v1
s_waitcnt lgkmcnt(0)""")
for i in range(16):
    a(f"v_sub_f32 {v(S1+i)}, 0, v8")
for kb in range(16):
    a(f"{MF32} {v(S0,16)}, {v(Kr+4*kb,4)}, {v(Qr,4)}, {v(S1,16)}")
    for i in range(16):
        a(f"v_exp_f32 {v(S0+i)}, {v(S0+i)}")
    for i in range(8):
        a(f"v_cvt_pk_bf16_f32 {v(P0+i)}, {v(S0+2*i)}, {v(S0+2*i+1)}")
    a(f"{MF32} {v(Or,16)}, {v(Vr+8*kb,4)}, {v(P0,4)}, {'0' if kb == 0 else v(Or,16)}")
    a(f"{MF32} {v(Or,16)}, {v(Vr+8*kb+4,4)}, {v(P1,4)}, {v(Or,16)}")
for g in range(3):
    a(f"ds_write_b128 v3, {v(Or+4*g,4)} offset:{1024*g}")
a(f"""v_add_u32 v1, 128, v1
v_add_u32 v2, 1024, v2
s_waitcnt lgkmcnt(0)
s_barrier
s_barrier
s_add_u32 {s(sI)}, {s(sI)}, 1
s_cmp_lt_u32 {s(sI)}, 8
s_cbranch_scc1 L_safe2
s_branch L_a_post""")

lines, nn = resolve(a.lines, verbose=bool(OPT.get("verbose")))
hdr = open(f"cdna_kernels/{NAME}.s.ref").read().split("; @launch")[0]
out = hdr + f"""; @launch grid=(256,1,1) block=(512,1,1) lds={LDS_SIZE}
.amdgcn_target "amdgcn-amd-amdhsa--gfx950"
.text
.globl {NAME}_kernel
.p2align 8
.type {NAME}_kernel,@function
{NAME}_kernel:
""" + "\n".join(lines) + f"""
.section .rodata,"a"
.p2align 6
.amdhsa_kernel {NAME}_kernel
  .amdhsa_next_free_vgpr 256
  .amdhsa_next_free_sgpr 102
  .amdhsa_accum_offset 256
  .amdhsa_group_segment_fixed_size 0
  .amdhsa_kernarg_size 104
  .amdhsa_user_sgpr_count 2
  .amdhsa_user_sgpr_kernarg_segment_ptr 1
  .amdhsa_system_sgpr_workgroup_id_x 1
.end_amdhsa_kernel
"""
dst = OPT.get("out", f"cdna_kernels/{NAME}.s")
open(dst, "w").write(out)
print(f"wrote {dst}: {len(lines)} lines, {nn} nops inserted")
```
